```python
import torch

def _softmax(x, axis=-1):
    return torch.softmax(x, dim=axis)
def _gelu(x):
    return torch.nn.functional.gelu(x, approximate="tanh")
def _silu(x):
    return torch.nn.functional.silu(x)
def _sigmoid(x):
    return torch.sigmoid(x)
def _layernorm(x, axis=-1, eps=1e-5):
    m = x.mean(dim=axis, keepdim=True)
    v = x.var(dim=axis, keepdim=True, unbiased=False)
    return (x - m) / torch.sqrt(v + eps)
def _scatter_add(tgt, idx, src, axis=0):
    return tgt.clone().index_add_(axis, idx, src)
def _segment_sum(src, seg, n):
    out = torch.zeros((n,) + src.shape[1:], dtype=src.dtype)
    return out.index_add_(0, seg, src)
def _pad(x, pw):
    flat = tuple(v for pair in reversed(pw) for v in pair)
    return torch.nn.functional.pad(x, flat)

kernel_name = 'standalone__instancenorm__prompt'

def setup_inputs():

    _w = (lambda a: (lambda t: t.to(torch.bfloat16) if t.is_floating_point() else t)(torch.as_tensor(a)))
    B, C, H, W = 1, 448, 4096, 16
    return {
        "x": _w(abs((lambda *s: torch.randn(*s, dtype=torch.bfloat16) * 0.05)(B, C, H, W))),
        "g": _w((lambda *s: torch.randn(*s, dtype=torch.bfloat16) * 0.05)(C) + 1.0),
        "b": _w((lambda *s: torch.randn(*s, dtype=torch.bfloat16) * 0.4)(C)),
    }

def reference(x, g, b):
    mu = x.mean(axis=(-2, -1), keepdims=True)
    var = ((x - mu) ** 2).mean(axis=(-2, -1), keepdims=True)
    xhat = (x - mu) / torch.sqrt(var + 1e-5)
    return xhat * g.reshape(1, -1, 1, 1) + b.reshape(1, -1, 1, 1)
```

```python
import sys, argparse

def gen(nt=1024, layout="wave", ldf="", stf="", lds=0, prof=0, delay=0, chmap="", name="standalone__instancenorm__prompt_kernel"):
    C = 448
    CHB = 131072
    L = CHB // (nt * 16)
    NW = nt // 64
    NPW = 65536 // NW
    D0 = 16
    o = []
    e = o.append
    ldsz = max(lds, 128)
    e(f"; @launch grid=({C},1,1) block=({nt},1,1) lds={ldsz}")
    e('.amdgcn_target "amdgcn-amd-amdhsa--gfx950"')
    e(".text")
    e(f".globl {name}")
    e(".p2align 8")
    e(f".type {name},@function")
    e(f"{name}:")
    if prof:
        e("  s_memrealtime s[24:25]")
        e("  s_memtime s[40:41]")
        e("  s_load_dwordx4 s[36:39], s[0:1], 32")
    e("  s_load_dwordx8 s[4:11], s[0:1], 0      ; x, g, b, out")
    e(f"  s_cmp_ge_u32 s2, {C}")
    e("  s_cbranch_scc1 L_end")
    if prof:
        e("  s_mov_b32 s19, s2")
    if chmap == "xor1":
        e("  s_xor_b32 s2, s2, 1")
    elif chmap == "blk":
        e("  s_and_b32 s3, s2, 7")
        e("  s_lshr_b32 s2, s2, 3")
        e("  s_mul_i32 s3, s3, 56")
        e("  s_add_u32 s2, s2, s3")
    e("  s_lshl_b32 s3, s2, 17")
    ngroups = (L + 7) // 8
    if layout == "wave":
        sh = {8: 7, 16: 8, 32: 9}[L]
        e("  v_and_b32 v2, 63, v0")
        e("  v_and_b32 v1, 0x3c0, v0")
        e("  s_add_u32 s3, s3, 4096")
        e("  v_lshlrev_b32 v2, 4, v2")
        e(f"  v_lshl_add_u32 v1, v1, {sh}, v2")
        e("  v_add_u32 v1, s3, v1")
        for gi in range(1, ngroups):
            e(f"  v_add_u32 v{1+gi}, {8192*gi}, v1")
        def addr(i):
            return f"v{1 + i//8}", (i % 8) * 1024 - 4096
    else:
        raise SystemExit("layout")
    e("  s_lshr_b32 s12, s2, 1")
    e("  s_lshl_b32 s12, s12, 2")
    e("  s_waitcnt lgkmcnt(0)")
    if delay:
        e("  s_memtime s[20:21]")
        e("  s_waitcnt lgkmcnt(0)")
        e("L_delay:")
        e("  s_memtime s[22:23]")
        e("  s_waitcnt lgkmcnt(0)")
        e("  s_sub_u32 s22, s22, s20")
        e(f"  s_cmp_lt_u32 s22, {delay}")
        e("  s_cbranch_scc1 L_delay")
    if prof:
        e("  s_memrealtime s[26:27]")
    for i in range(L):
        v, off = addr(i)
        e(f"  global_load_dwordx4 v[{D0+4*i}:{D0+4*i+3}], {v}, s[4:5] offset:{off} {ldf}")
    e("  s_load_dword s14, s[6:7], s12           ; g pair")
    e("  s_load_dword s15, s[8:9], s12           ; b pair")
    e("  s_mov_b32 s13, 0xffff0000")
    e("  v_mov_b32 v6, 0")
    e("  v_mov_b32 v7, 0")
    e("  v_mov_b32 v8, 0")
    e("  v_mov_b32 v9, 0")
    e("  v_lshrrev_b32 v5, 6, v0                 ; wave id")
    e("  v_lshlrev_b32 v5, 3, v5                 ; lds addr of this wave's pair")
    e(f"  v_and_b32 v0, {NW-1}, v0")
    e("  v_lshlrev_b32 v0, 3, v0")
    for i in range(L):
        e(f"  s_waitcnt vmcnt({L-1-i})")
        if prof and i == 0:
            e("  s_memrealtime s[28:29]")
        if prof and i == L-1:
            e("  s_memrealtime s[30:31]")
        if i == 0:
            e(f"  v_readfirstlane_b32 s16, v{D0}")
            e("  s_lshl_b32 s16, s16, 16                 ; K = first element of the wave")
        for j in range(4):
            d = D0 + 4*i + j
            t = 10 + 2*(j & 1)
            e(f"  v_lshlrev_b32 v{t}, 16, v{d}")
            e(f"  v_and_b32 v{t+1}, s13, v{d}")
            e(f"  v_pk_add_f32 v[{t}:{t+1}], v[{t}:{t+1}], s[16:17] op_sel_hi:[1,0] neg_lo:[0,1] neg_hi:[0,1]")
            e(f"  v_pk_add_f32 v[6:7], v[6:7], v[{t}:{t+1}]")
            e(f"  v_pk_fma_f32 v[8:9], v[{t}:{t+1}], v[{t}:{t+1}], v[8:9]")
    e("  v_add_f32 v6, v6, v7                    ; S")
    e("  v_add_f32 v7, v8, v9                    ; Q")
    e("  s_nop 0")
    for dpp in ["quad_perm:[1,0,3,2] row_mask:0xf bank_mask:0xf", "quad_perm:[2,3,0,1] row_mask:0xf bank_mask:0xf",
                "row_half_mirror row_mask:0xf bank_mask:0xf", "row_mirror row_mask:0xf bank_mask:0xf",
                "row_bcast:15 row_mask:0xa bank_mask:0xf", "row_bcast:31 row_mask:0xc bank_mask:0xf"]:
        e(f"  v_add_f32_dpp v6, v6, v6 {dpp}")
        e(f"  v_add_f32_dpp v7, v7, v7 {dpp}")
        e("  s_nop 0")
    import struct
    def f2h(x): return "0x%08x" % struct.unpack("<I", struct.pack("<f", x))[0]
    e(f"  v_mul_f32 v8, {f2h(1.0/NPW)}, v6        ; S/n")
    e("  v_fma_f32 v7, -v8, v6, v7               ; M2")
    e("  v_add_f32 v6, s16, v8                   ; wave mean")
    e("  s_mov_b32 exec_lo, 0")
    e("  s_brev_b32 exec_hi, 1")
    e("  ds_write_b64 v5, v[6:7]")
    e("  s_mov_b64 exec, -1")
    e("  s_waitcnt lgkmcnt(0)")
    e("  s_barrier")
    if prof:
        e("  s_memrealtime s[32:33]")
    e("  ds_read_b64 v[6:7], v0")
    e("  s_bitcmp1_b32 s2, 0")
    e("  s_cselect_b32 s17, 0, 16")
    e("  s_lshl_b32 s14, s14, s17")
    e("  s_lshl_b32 s15, s15, s17")
    e("  s_and_b32 s14, s14, s13                 ; g as f32")
    e("  s_and_b32 s15, s15, s13                 ; b as f32")
    steps = {16: 4, 8: 3, 4: 2}[NW]
    dpps = ["quad_perm:[1,0,3,2] row_mask:0xf bank_mask:0xf", "quad_perm:[2,3,0,1] row_mask:0xf bank_mask:0xf",
            "row_half_mirror row_mask:0xf bank_mask:0xf", "row_mirror row_mask:0xf bank_mask:0xf"][:steps]
    e("  s_waitcnt lgkmcnt(0)")
    src = "v6"
    for dpp in dpps:
        e(f"  v_add_f32_dpp v8, {src}, {src} {dpp}")
        e("  s_nop 1")
        src = "v8"
    e(f"  v_mul_f32 v8, {f2h(1.0/NW)}, v8          ; mu")
    e("  v_sub_f32 v6, v6, v8                    ; m_w - mu")
    e(f"  v_mul_f32 v9, {f2h(float(NPW))}, v6")
    e("  v_fmac_f32 v7, v9, v6                   ; M2_w + n*(m_w-mu)^2")
    e("  v_cvt_pk_bf16_f32 v10, v8, v8")
    e("  v_and_b32 v10, s13, v10")
    for dpp in dpps:
        e(f"  v_add_f32_dpp v7, v7, v7 {dpp}")
        e("  s_nop 1")
    e("  v_sub_f32 v8, v8, v10")
    e("  v_mul_f32 v8, v8, v8")
    e(f"  v_fmac_f32 v8, {f2h(1.0/65536)}, v7")
    e("  v_max_f32 v8, 0, v8")
    e("  v_cvt_pk_bf16_f32 v8, v8, v8")
    e("  v_and_b32 v8, s13, v8")
    e(f"  v_add_f32 v8, {f2h(1e-5)}, v8")
    e("  v_cvt_pk_bf16_f32 v8, v8, v8")
    e("  v_and_b32 v8, s13, v8")
    e("  v_sqrt_f32 v8, v8")
    e("  s_nop 0")
    e("  v_cvt_pk_bf16_f32 v8, v8, v8")
    e("  v_and_b32 v8, s13, v8")
    e("  v_rcp_f32 v8, v8")
    e("  v_mov_b32 v9, s15                       ; b")
    e("  v_mul_f32 v8, s14, v8                   ; scale = g / s")
    for i in range(L):
        for j in range(4):
            d = D0 + 4*i + j
            t = 12 + 2*(j & 1)
            e(f"  v_lshlrev_b32 v{t}, 16, v{d}")
            e(f"  v_and_b32 v{t+1}, s13, v{d}")
            e(f"  v_pk_add_f32 v[{t}:{t+1}], v[{t}:{t+1}], v[10:11] op_sel_hi:[1,0] neg_lo:[0,1] neg_hi:[0,1]")
            e(f"  v_pk_fma_f32 v[{t}:{t+1}], v[{t}:{t+1}], v[8:9], v[8:9] op_sel:[0,0,1] op_sel_hi:[1,0,1]")
            e(f"  v_cvt_pk_bf16_f32 v{d}, v{t}, v{t+1}")
        v, off = addr(i)
        e(f"  global_store_dwordx4 {v}, v[{D0+4*i}:{D0+4*i+3}], s[10:11] offset:{off} {stf}")
    if prof:
        e("  s_memrealtime s[34:35]")
        e("  s_waitcnt vmcnt(0)")
        e("  s_memrealtime s[42:43]")
        e("  s_memtime s[44:45]")
        e("  s_getreg_b32 s46, hwreg(HW_REG_XCC_ID)")
        e("  s_getreg_b32 s47, hwreg(HW_REG_HW_ID)")
        e("  s_waitcnt lgkmcnt(0)")
        e("  s_sub_u32 s44, s44, s40")
        e(f"  s_mul_i32 s3, s19, {NW*64}")
        e("  v_lshlrev_b32 v5, 3, v5")
        e("  v_add_u32 v5, s3, v5")
        for k, r in enumerate([24, 26, 28, 30]):
            e(f"  v_mov_b32 v{8+k}, s{r}")
        for k, r in enumerate([32, 34, 42, 44]):
            e(f"  v_mov_b32 v{12+k}, s{r}")
        e("  s_mov_b64 exec, 1")
        e("  global_store_dwordx4 v5, v[8:11], s[38:39]")
        e("  global_store_dwordx4 v5, v[12:15], s[38:39] offset:16")
        e("  v_mov_b32 v16, s46")
        e("  v_mov_b32 v17, s47")
        e("  global_store_dwordx2 v5, v[16:17], s[38:39] offset:32")
        if prof == 2:
            e("  v_mov_b32 v0, 0")
            e("  v_not_b32 v8, v8")
            e("  global_atomic_umax v0, v8, s[36:37]")
            e("  global_atomic_umax v0, v14, s[36:37] offset:4")
            e("  global_atomic_umax v0, v15, s[36:37] offset:8")
            e("  v_sub_u32 v14, v14, v9")
            e("  global_atomic_umax v0, v14, s[36:37] offset:12")
    e("L_end:")
    e("  s_endpgm")
    nv = D0 + 4*L
    e('.section .rodata,"a"')
    e(".p2align 6")
    e(f".amdhsa_kernel {name}")
    e(f"  .amdhsa_next_free_vgpr {nv}")
    e(f"  .amdhsa_next_free_sgpr {48 if prof else 24}")
    e(f"  .amdhsa_accum_offset {(nv+3)//4*4}")
    e("  .amdhsa_group_segment_fixed_size 0")
    e("  .amdhsa_kernarg_size 48")
    e("  .amdhsa_user_sgpr_count 2")
    e("  .amdhsa_user_sgpr_kernarg_segment_ptr 1")
    e("  .amdhsa_system_sgpr_workgroup_id_x 1")
    e("  .amdhsa_float_denorm_mode_32 3")
    e(".end_amdhsa_kernel")
    return "\n".join(o) + "\n"

if __name__ == "__main__":
    ap = argparse.ArgumentParser()
    ap.add_argument("--nt", type=int, default=1024)
    ap.add_argument("--layout", default="wave")
    ap.add_argument("--ldf", default="")
    ap.add_argument("--stf", default="")
    ap.add_argument("--lds", type=int, default=0)
    ap.add_argument("--prof", type=int, default=0)
    ap.add_argument("--delay", type=int, default=0)
    ap.add_argument("--chmap", default="")
    ap.add_argument("-o", default="-")
    a = ap.parse_args()
    s = gen(a.nt, a.layout, a.ldf, a.stf, a.lds, a.prof, a.delay, a.chmap)
    if a.o == "-": sys.stdout.write(s)
    else: open(a.o, "w").write(s)
```

```python
import sys
import gen1
main = gen1.gen(256, "wave", "nt", "sc1", 65536, 0, 0, "blk")
lines = main.split("\n")
hdr = "; @launch kernel=probe_kernel grid=(1,1,1) block=(64,1,1) lds=0\n; @launch kernel=standalone__instancenorm__prompt_kernel grid=(448,1,1) block=(256,1,1) lds=65536"
lines[0] = hdr
o=[]; e=o.append
e(".text"); e(".globl probe_kernel"); e(".p2align 8"); e(".type probe_kernel,@function"); e("probe_kernel:")
e("  s_load_dwordx8 s[4:11], s[0:1], 0")
e("  s_load_dwordx2 s[12:13], s[0:1], 32")
e("  s_cmp_lg_u32 s2, 0"); e("  s_cbranch_scc1 P_end")
e("  s_getreg_b32 s40, hwreg(HW_REG_XCC_ID, 0, 4)")
e("  s_waitcnt lgkmcnt(0)")
for bi, base in enumerate((4, 10)):
    e(f"  s_mov_b32 s{30+bi}, 0            ; mask")
    e(f"  s_mov_b32 s{32+bi}, 0x7fffffff")
    e("  s_mov_b32 s14, 0                ; page")
    e(f"P_page{bi}:")
    e("  s_lshl_b32 s15, s14, 21")
    e("  s_add_u32 s16, s15, 0x100080")
    e(f"  s_load_dword s17, s[{base}:{base+1}], s16")
    e("  s_waitcnt lgkmcnt(0)")
    e("  s_mov_b32 s18, 0"); e("  s_mov_b32 s19, 0"); e("  s_mov_b32 s20, 0")
    e(f"P_smp{bi}:")
    for par in (0, 1):
        e("  s_lshr_b32 s16, s20, 1"); e("  s_lshl_b32 s16, s16, 14")
        e("  s_and_b32 s21, s20, 1"); e("  s_lshl_b32 s21, s21, 12")
        e("  s_add_u32 s16, s16, s21"); e("  s_add_u32 s16, s16, s15")
        e(f"  s_add_u32 s16, s16, {par*8192+0x300}")
        e("  s_memtime s[22:23]"); e("  s_waitcnt lgkmcnt(0)")
        e(f"  s_load_dword s17, s[{base}:{base+1}], s16"); e("  s_waitcnt lgkmcnt(0)")
        e("  s_memtime s[24:25]"); e("  s_waitcnt lgkmcnt(0)")
        e("  s_sub_u32 s24, s24, s22")
        e("  s_min_u32 s24, s24, 1400"); e("  s_max_u32 s24, s24, 350")
        e(f"  s_add_u32 s{18+par}, s{18+par}, s24")
    e("  s_add_u32 s20, s20, 1"); e("  s_cmp_lt_u32 s20, 16"); e(f"  s_cbranch_scc1 P_smp{bi}")
    e(f"  s_mov_b32 s{34+2*bi}, s18"); e(f"  s_mov_b32 s{35+2*bi}, s19")
    e("  s_sub_i32 s21, s18, s19"); e("  s_abs_i32 s26, s21")
    e(f"  s_min_u32 s{32+bi}, s{32+bi}, s26")
    e("  s_cmp_gt_i32 s21, 0"); e("  s_cselect_b32 s21, 1, 0")
    e("  s_lshl_b32 s21, s21, s14"); e(f"  s_or_b32 s{30+bi}, s{30+bi}, s21")
    e("  s_add_u32 s14, s14, 1"); e("  s_cmp_lt_u32 s14, 28"); e(f"  s_cbranch_scc1 P_page{bi}")
e("  s_xor_b32 s41, s30, s31")
e("  s_lshr_b32 s42, s4, 21"); e("  s_lshr_b32 s43, s10, 21")
for k, r in enumerate([30,31,41,40,32,33,34,35,36,37,42,43]):
    e(f"  v_mov_b32 v{4+k}, s{r}")
e("  v_mov_b32 v0, 0")
e("  s_mov_b64 exec, 1")
e("  global_store_dwordx4 v0, v[4:7], s[12:13]")
e("  global_store_dwordx4 v0, v[8:11], s[12:13] offset:16")
e("  global_store_dwordx4 v0, v[12:15], s[12:13] offset:32")
e("P_end:"); e("  s_endpgm")
e('.section .rodata,"a"'); e(".p2align 6"); e(".amdhsa_kernel probe_kernel")
e("  .amdhsa_next_free_vgpr 16"); e("  .amdhsa_next_free_sgpr 48"); e("  .amdhsa_accum_offset 16")
e("  .amdhsa_group_segment_fixed_size 0"); e("  .amdhsa_kernarg_size 48"); e("  .amdhsa_user_sgpr_count 2")
e("  .amdhsa_user_sgpr_kernarg_segment_ptr 1"); e("  .amdhsa_system_sgpr_workgroup_id_x 1"); e(".end_amdhsa_kernel")
open(sys.argv[1], "w").write("\n".join(lines) + "\n".join(o) + "\n")
```

```python
import sys, argparse

def gen(nt=1024, layout="wave", ldf="", stf="", lds=0, prof=0, delay=0, chmap="", prio=0, amp=None, pf="", name="standalone__instancenorm__prompt_kernel"):
    C = 448
    CHB = 131072
    L = CHB // (nt * 16)
    NW = nt // 64
    NPW = 65536 // NW
    D0 = 16
    o = []
    e = o.append
    ldsz = max(lds, 128)
    e(f"; @launch grid=({C},1,1) block=({nt},1,1) lds={ldsz}")
    e('.amdgcn_target "amdgcn-amd-amdhsa--gfx950"')
    e(".text")
    e(f".globl {name}")
    e(".p2align 8")
    e(f".type {name},@function")
    e(f"{name}:")
    if prof:
        e("  s_memrealtime s[24:25]")
        e("  s_memtime s[40:41]")
        e("  s_load_dwordx4 s[36:39], s[0:1], 32")
    e("  s_load_dwordx8 s[4:11], s[0:1], 0      ; x, g, b, out")
    if prio: e("  s_setprio 3")
    e(f"  s_cmp_ge_u32 s2, {C}")
    e("  s_cbranch_scc1 L_end")
    if prof:
        e("  s_mov_b32 s19, s2")
    if chmap == "xor1":
        e("  s_xor_b32 s2, s2, 1")
    elif chmap == "blk":
        e("  s_and_b32 s3, s2, 7")
        e("  s_lshr_b32 s2, s2, 3")
        e("  s_mul_i32 s3, s3, 56")
        e("  s_add_u32 s2, s2, s3")
    e("  s_lshl_b32 s3, s2, 17")
    ngroups = (L + 7) // 8
    if layout == "wave":
        sh = {8: 7, 16: 8, 32: 9}[L]
        e("  v_and_b32 v2, 63, v0")
        e("  v_and_b32 v1, 0x3c0, v0")
        e("  s_add_u32 s3, s3, 4096")
        e("  v_lshlrev_b32 v2, 4, v2")
        e(f"  v_lshl_add_u32 v1, v1, {sh}, v2")
        e("  v_add_u32 v1, s3, v1")
        for gi in range(1, ngroups):
            e(f"  v_add_u32 v{1+gi}, {8192*gi}, v1")
        def addr(i):
            return f"v{1 + i//8}", (i % 8) * 1024 - 4096
    else:
        raise SystemExit("layout")
    e("  s_lshr_b32 s12, s2, 1")
    e("  s_lshl_b32 s12, s12, 2")
    e("  s_waitcnt lgkmcnt(0)")
    if delay:
        e("  s_memtime s[20:21]")
        e("  s_waitcnt lgkmcnt(0)")
        e("L_delay:")
        e("  s_memtime s[22:23]")
        e("  s_waitcnt lgkmcnt(0)")
        e("  s_sub_u32 s22, s22, s20")
        e(f"  s_cmp_lt_u32 s22, {delay}")
        e("  s_cbranch_scc1 L_delay")
    if prof:
        e("  s_memrealtime s[26:27]")
    if "x" in pf: e("  s_load_dword s20, s[4:5], s3")
    if "o" in pf: e("  s_load_dword s21, s[10:11], s3")
    if "v" in pf: e("  global_load_dword v6, v1, s[10:11]")
    for i in range(L):
        v, off = addr(i)
        e(f"  global_load_dwordx4 v[{D0+4*i}:{D0+4*i+3}], {v}, s[4:5] offset:{off} {ldf}")
    if prio == 1: e("  s_setprio 0")
    e("  s_load_dword s14, s[6:7], s12           ; g pair")
    e("  s_load_dword s15, s[8:9], s12           ; b pair")
    e("  s_mov_b32 s13, 0xffff0000")
    if "v" in pf: e(f"  s_waitcnt vmcnt({L})")
    e("  v_mov_b32 v6, 0")
    e("  v_mov_b32 v7, 0")
    e("  v_mov_b32 v8, 0")
    e("  v_mov_b32 v9, 0")
    e("  v_lshrrev_b32 v5, 6, v0                 ; wave id")
    e("  v_lshlrev_b32 v5, 3, v5                 ; lds addr of this wave's pair")
    e(f"  v_and_b32 v0, {NW-1}, v0")
    e("  v_lshlrev_b32 v0, 3, v0")
    for i in range(L):
        e(f"  s_waitcnt vmcnt({L-1-i})")
        if prof and i == 0:
            e("  s_memrealtime s[28:29]")
        if prof and i == L-1:
            e("  s_memrealtime s[30:31]")
        if i == 0:
            e(f"  v_readfirstlane_b32 s16, v{D0}")
            e("  s_lshl_b32 s16, s16, 16                 ; K = first element of the wave")
        for j in range(4):
            d = D0 + 4*i + j
            t = 10 + 2*(j & 1)
            e(f"  v_lshlrev_b32 v{t}, 16, v{d}")
            e(f"  v_and_b32 v{t+1}, s13, v{d}")
            e(f"  v_pk_add_f32 v[{t}:{t+1}], v[{t}:{t+1}], s[16:17] op_sel_hi:[1,0] neg_lo:[0,1] neg_hi:[0,1]")
            e(f"  v_pk_add_f32 v[6:7], v[6:7], v[{t}:{t+1}]")
            e(f"  v_pk_fma_f32 v[8:9], v[{t}:{t+1}], v[{t}:{t+1}], v[8:9]")
    e("  v_add_f32 v6, v6, v7                    ; S")
    e("  v_add_f32 v7, v8, v9                    ; Q")
    e("  s_nop 0")
    for dpp in ["quad_perm:[1,0,3,2] row_mask:0xf bank_mask:0xf", "quad_perm:[2,3,0,1] row_mask:0xf bank_mask:0xf",
                "row_half_mirror row_mask:0xf bank_mask:0xf", "row_mirror row_mask:0xf bank_mask:0xf",
                "row_bcast:15 row_mask:0xa bank_mask:0xf", "row_bcast:31 row_mask:0xc bank_mask:0xf"]:
        e(f"  v_add_f32_dpp v6, v6, v6 {dpp}")
        e(f"  v_add_f32_dpp v7, v7, v7 {dpp}")
        e("  s_nop 0")
    import struct
    def f2h(x): return "0x%08x" % struct.unpack("<I", struct.pack("<f", x))[0]
    e(f"  v_mul_f32 v8, {f2h(1.0/NPW)}, v6        ; S/n")
    e("  v_fma_f32 v7, -v8, v6, v7               ; M2")
    e("  v_add_f32 v6, s16, v8                   ; wave mean")
    e("  s_mov_b32 exec_lo, 0")
    e("  s_brev_b32 exec_hi, 1")
    e("  ds_write_b64 v5, v[6:7]")
    e("  s_mov_b64 exec, -1")
    e("  s_waitcnt lgkmcnt(0)")
    e("  s_barrier")
    if prof:
        e("  s_memrealtime s[32:33]")
    e("  ds_read_b64 v[6:7], v0")
    e("  s_bitcmp1_b32 s2, 0")
    e("  s_cselect_b32 s17, 0, 16")
    e("  s_lshl_b32 s14, s14, s17")
    e("  s_lshl_b32 s15, s15, s17")
    e("  s_and_b32 s14, s14, s13                 ; g as f32")
    e("  s_and_b32 s15, s15, s13                 ; b as f32")
    steps = {16: 4, 8: 3, 4: 2}[NW]
    dpps = ["quad_perm:[1,0,3,2] row_mask:0xf bank_mask:0xf", "quad_perm:[2,3,0,1] row_mask:0xf bank_mask:0xf",
            "row_half_mirror row_mask:0xf bank_mask:0xf", "row_mirror row_mask:0xf bank_mask:0xf"][:steps]
    e("  s_waitcnt lgkmcnt(0)")
    src = "v6"
    for dpp in dpps:
        e(f"  v_add_f32_dpp v8, {src}, {src} {dpp}")
        e("  s_nop 1")
        src = "v8"
    e(f"  v_mul_f32 v8, {f2h(1.0/NW)}, v8          ; mu")
    e("  v_sub_f32 v6, v6, v8                    ; m_w - mu")
    e(f"  v_mul_f32 v9, {f2h(float(NPW))}, v6")
    e("  v_fmac_f32 v7, v9, v6                   ; M2_w + n*(m_w-mu)^2")
    e("  v_cvt_pk_bf16_f32 v10, v8, v8")
    e("  v_and_b32 v10, s13, v10")
    for dpp in dpps:
        e(f"  v_add_f32_dpp v7, v7, v7 {dpp}")
        e("  s_nop 1")
    e("  v_sub_f32 v8, v8, v10")
    e("  v_mul_f32 v8, v8, v8")
    e(f"  v_fmac_f32 v8, {f2h(1.0/65536)}, v7")
    e("  v_max_f32 v8, 0, v8")
    e("  v_cvt_pk_bf16_f32 v8, v8, v8")
    e("  v_and_b32 v8, s13, v8")
    e(f"  v_add_f32 v8, {f2h(1e-5)}, v8")
    e("  v_cvt_pk_bf16_f32 v8, v8, v8")
    e("  v_and_b32 v8, s13, v8")
    e("  v_sqrt_f32 v8, v8")
    e("  s_nop 0")
    e("  v_cvt_pk_bf16_f32 v8, v8, v8")
    e("  v_and_b32 v8, s13, v8")
    e("  v_rcp_f32 v8, v8")
    e("  v_mov_b32 v9, s15                       ; b")
    e("  v_mul_f32 v8, s14, v8                   ; scale = g / s")
    if prio == 2: e("  s_setprio 0")
    for i in range(L):
        for j in range(4):
            d = D0 + 4*i + j
            t = 12 + 2*(j & 1)
            e(f"  v_lshlrev_b32 v{t}, 16, v{d}")
            e(f"  v_and_b32 v{t+1}, s13, v{d}")
            e(f"  v_pk_add_f32 v[{t}:{t+1}], v[{t}:{t+1}], v[10:11] op_sel_hi:[1,0] neg_lo:[0,1] neg_hi:[0,1]")
            e(f"  v_pk_fma_f32 v[{t}:{t+1}], v[{t}:{t+1}], v[8:9], v[8:9] op_sel:[0,0,1] op_sel_hi:[1,0,1]")
            e(f"  v_cvt_pk_bf16_f32 v{d}, v{t}, v{t+1}")
        v, off = addr(i)
        e(f"  global_store_dwordx4 {v}, v[{D0+4*i}:{D0+4*i+3}], s[10:11] offset:{off} {stf}")
    if prof:
        e("  s_memrealtime s[34:35]")
        e("  s_waitcnt vmcnt(0)")
        e("  s_memrealtime s[42:43]")
        e("  s_memtime s[44:45]")
        e("  s_getreg_b32 s46, hwreg(HW_REG_XCC_ID)")
        e("  s_getreg_b32 s47, hwreg(HW_REG_HW_ID)")
        e("  s_waitcnt lgkmcnt(0)")
        if amp:
            a0, a1, k = amp
            regs = [24, 26, 28, 30, 32, 34, 42]
            e(f"  s_sub_u32 s20, s{regs[a1]}, s{regs[a0]}")
            e(f"  s_mul_i32 s20, s20, {k}")
            e("  s_min_u32 s20, s20, 50000")
            e("L_amp:")
            e("  s_memrealtime s[22:23]")
            e("  s_waitcnt lgkmcnt(0)")
            e("  s_sub_u32 s22, s22, s42")
            e("  s_cmp_lt_u32 s22, s20")
            e("  s_cbranch_scc1 L_amp")
            e("  s_endpgm")
        e("  s_sub_u32 s44, s44, s40")
        e(f"  s_mul_i32 s3, s19, {NW*64}")
        e("  v_lshlrev_b32 v5, 3, v5")
        e("  v_add_u32 v5, s3, v5")
        for k, r in enumerate([24, 26, 28, 30]):
            e(f"  v_mov_b32 v{8+k}, s{r}")
        for k, r in enumerate([32, 34, 42, 44]):
            e(f"  v_mov_b32 v{12+k}, s{r}")
        e("  s_mov_b64 exec, 1")
        e("  global_store_dwordx4 v5, v[8:11], s[38:39]")
        e("  global_store_dwordx4 v5, v[12:15], s[38:39] offset:16")
        e("  v_mov_b32 v16, s46")
        e("  v_mov_b32 v17, s47")
        e("  global_store_dwordx2 v5, v[16:17], s[38:39] offset:32")
        if prof == 2:
            e("  v_mov_b32 v0, 0")
            e("  v_not_b32 v8, v8")
            e("  global_atomic_umax v0, v8, s[36:37]")
            e("  global_atomic_umax v0, v14, s[36:37] offset:4")
            e("  global_atomic_umax v0, v15, s[36:37] offset:8")
            e("  v_sub_u32 v14, v14, v9")
            e("  global_atomic_umax v0, v14, s[36:37] offset:12")
    e("L_end:")
    e("  s_endpgm")
    nv = D0 + 4*L
    e('.section .rodata,"a"')
    e(".p2align 6")
    e(f".amdhsa_kernel {name}")
    e(f"  .amdhsa_next_free_vgpr {nv}")
    e(f"  .amdhsa_next_free_sgpr {48 if prof else 24}")
    e(f"  .amdhsa_accum_offset {(nv+3)//4*4}")
    e("  .amdhsa_group_segment_fixed_size 0")
    e("  .amdhsa_kernarg_size 48")
    e("  .amdhsa_user_sgpr_count 2")
    e("  .amdhsa_user_sgpr_kernarg_segment_ptr 1")
    e("  .amdhsa_system_sgpr_workgroup_id_x 1")
    e("  .amdhsa_float_denorm_mode_32 3")
    e(".end_amdhsa_kernel")
    return "\n".join(o) + "\n"

if __name__ == "__main__":
    ap = argparse.ArgumentParser()
    ap.add_argument("--nt", type=int, default=1024)
    ap.add_argument("--layout", default="wave")
    ap.add_argument("--ldf", default="")
    ap.add_argument("--stf", default="")
    ap.add_argument("--lds", type=int, default=0)
    ap.add_argument("--prof", type=int, default=0)
    ap.add_argument("--delay", type=int, default=0)
    ap.add_argument("--chmap", default="")
    ap.add_argument("--prio", type=int, default=0)
    ap.add_argument("--amp", default="")
    ap.add_argument("--pf", default="")
    ap.add_argument("-o", default="-")
    a = ap.parse_args()
    s = gen(a.nt, a.layout, a.ldf, a.stf, a.lds, a.prof, a.delay, a.chmap, a.prio, tuple(map(int,a.amp.split(","))) if a.amp else None, a.pf)
    if a.o == "-": sys.stdout.write(s)
    else: open(a.o, "w").write(s)
```

```python
import sys
import gen1
main = gen1.gen(256, "wave", "nt", "sc1", 65536, 0, 0, "blk")
lines = main.split("\n")
hdr = "; @launch kernel=probe_kernel grid=(1,1,1) block=(64,1,1) lds=0\n; @launch kernel=standalone__instancenorm__prompt_kernel grid=(448,1,1) block=(256,1,1) lds=65536"
lines[0] = hdr
o=[]; e=o.append
e(".text"); e(".globl probe_kernel"); e(".p2align 8"); e(".type probe_kernel,@function"); e("probe_kernel:")
e("  s_load_dwordx8 s[4:11], s[0:1], 0")
e("  s_load_dwordx2 s[12:13], s[0:1], 32")
e("  s_cmp_lg_u32 s2, 0"); e("  s_cbranch_scc1 P_end")
e("  s_getreg_b32 s40, hwreg(HW_REG_XCC_ID, 0, 4)")
e("  s_waitcnt lgkmcnt(0)")
for bi, base in enumerate((4, 10)):
    e(f"  s_mov_b32 s{30+bi}, 0            ; mask")
    e(f"  s_mov_b32 s{32+bi}, 0x7fffffff")
    e("  s_mov_b32 s14, 0                ; page")
    e(f"P_page{bi}:")
    e("  s_lshl_b32 s15, s14, 21")
    e("  s_add_u32 s16, s15, 0x100080")
    e(f"  s_load_dword s17, s[{base}:{base+1}], s16")
    e("  s_waitcnt lgkmcnt(0)")
    e("  s_mov_b32 s18, 0"); e("  s_mov_b32 s19, 0"); e("  s_mov_b32 s20, 0")
    e(f"P_smp{bi}:")
    for par in (0, 1):
        e("  s_lshr_b32 s16, s20, 1"); e("  s_lshl_b32 s16, s16, 14")
        e("  s_and_b32 s21, s20, 1"); e("  s_lshl_b32 s21, s21, 12")
        e("  s_add_u32 s16, s16, s21"); e("  s_add_u32 s16, s16, s15")
        e(f"  s_add_u32 s16, s16, {par*8192+0x300}")
        e("  s_memtime s[22:23]"); e("  s_waitcnt lgkmcnt(0)")
        e(f"  s_load_dword s17, s[{base}:{base+1}], s16"); e("  s_waitcnt lgkmcnt(0)")
        e("  s_memtime s[24:25]"); e("  s_waitcnt lgkmcnt(0)")
        e("  s_sub_u32 s24, s24, s22")
        e("  s_min_u32 s24, s24, 1400"); e("  s_max_u32 s24, s24, 350")
        e(f"  s_add_u32 s{18+par}, s{18+par}, s24")
    e("  s_add_u32 s20, s20, 1"); e("  s_cmp_lt_u32 s20, 8"); e(f"  s_cbranch_scc1 P_smp{bi}")
    e(f"  s_mov_b32 s{34+2*bi}, s18"); e(f"  s_mov_b32 s{35+2*bi}, s19")
    e("  s_sub_i32 s21, s18, s19"); e("  s_abs_i32 s26, s21")
    e(f"  s_min_u32 s{32+bi}, s{32+bi}, s26")
    e("  s_cmp_gt_i32 s21, 0"); e("  s_cselect_b32 s21, 1, 0")
    e("  s_lshl_b32 s21, s21, s14"); e(f"  s_or_b32 s{30+bi}, s{30+bi}, s21")
    e("  s_add_u32 s14, s14, 1"); e("  s_cmp_lt_u32 s14, 28"); e(f"  s_cbranch_scc1 P_page{bi}")
e("  s_xor_b32 s41, s30, s31")
if len(sys.argv) > 2:
    e("  s_bfe_u32 s44, s41, 0x10008"); e("  s_bfe_u32 s45, s41, 0x10014"); e("  s_bfe_u32 s46, s41, 0x1001a")
    e("  s_lshl_b32 s45, s45, 1"); e("  s_lshl_b32 s46, s46, 2"); e("  s_or_b32 s44, s44, s45"); e("  s_or_b32 s44, s44, s46")
    e("  s_mul_i32 s44, s44, 10000")
    e("  s_bcnt1_i32_b32 s45, s41"); e("  s_mul_i32 s45, s45, 300"); e("  s_add_u32 s44, s44, s45")
    if sys.argv[2] == "0": e("  s_mov_b32 s44, 0")
    if sys.argv[2].startswith("b"):
        e(f"  s_bfe_u32 s44, s41, {0x60000 + int(sys.argv[2][1:]):#x}"); e("  s_mul_i32 s44, s44, 2000")
    if sys.argv[2] == "x":
        e("  s_mul_i32 s44, s40, 5000")
    e("  s_add_u32 s44, s44, 200000")
    e("  s_memrealtime s[22:23]"); e("  s_waitcnt lgkmcnt(0)")
    e("P_amp:")
    e("  s_memrealtime s[24:25]"); e("  s_waitcnt lgkmcnt(0)"); e("  s_sub_u32 s24, s24, s22"); e("  s_cmp_lt_u32 s24, s44"); e("  s_cbranch_scc1 P_amp")
e("  s_lshr_b32 s42, s4, 21"); e("  s_lshr_b32 s43, s10, 21")
for k, r in enumerate([30,31,41,40,32,33,34,35,36,37,42,43]):
    e(f"  v_mov_b32 v{4+k}, s{r}")
e("  v_mov_b32 v0, 0")
e("  s_mov_b64 exec, 1")
e("  global_store_dwordx4 v0, v[4:7], s[12:13]")
e("  global_store_dwordx4 v0, v[8:11], s[12:13] offset:16")
e("  global_store_dwordx4 v0, v[12:15], s[12:13] offset:32")
e("P_end:"); e("  s_endpgm")
e('.section .rodata,"a"'); e(".p2align 6"); e(".amdhsa_kernel probe_kernel")
e("  .amdhsa_next_free_vgpr 16"); e("  .amdhsa_next_free_sgpr 48"); e("  .amdhsa_accum_offset 16")
e("  .amdhsa_group_segment_fixed_size 0"); e("  .amdhsa_kernarg_size 48"); e("  .amdhsa_user_sgpr_count 2")
e("  .amdhsa_user_sgpr_kernarg_segment_ptr 1"); e("  .amdhsa_system_sgpr_workgroup_id_x 1"); e(".end_amdhsa_kernel")
open(sys.argv[1], "w").write("\n".join(lines) + "\n".join(o) + "\n")
```

```python
import sys, argparse

def gen(nt=1024, layout="wave", ldf="", stf="", lds=0, prof=0, delay=0, chmap="", prio=0, amp=None, pf="", name="standalone__instancenorm__prompt_kernel"):
    C = 448
    CHB = 131072
    L = CHB // (nt * 16)
    NW = nt // 64
    NPW = 65536 // NW
    D0 = 16
    o = []
    e = o.append
    ldsz = max(lds, 128)
    e(f"; @launch grid=({C},1,1) block=({nt},1,1) lds={ldsz}")
    e('.amdgcn_target "amdgcn-amd-amdhsa--gfx950"')
    e(".text")
    e(f".globl {name}")
    e(".p2align 8")
    e(f".type {name},@function")
    e(f"{name}:")
    if prof:
        e("  s_memrealtime s[24:25]")
        e("  s_memtime s[40:41]")
        e("  s_load_dwordx4 s[36:39], s[0:1], 32")
    e("  s_load_dwordx8 s[4:11], s[0:1], 0      ; x, g, b, out")
    if prio: e("  s_setprio 3")
    e(f"  s_cmp_ge_u32 s2, {C}")
    e("  s_cbranch_scc1 L_end")
    if prof:
        e("  s_mov_b32 s19, s2")
    if chmap == "xor1":
        e("  s_xor_b32 s2, s2, 1")
    elif chmap == "blk":
        e("  s_and_b32 s3, s2, 7")
        e("  s_lshr_b32 s2, s2, 3")
        e("  s_mul_i32 s3, s3, 56")
        e("  s_add_u32 s2, s2, s3")
    elif chmap == "pair":
        e("  s_and_b32 s3, s2, 3")
        e("  s_lshr_b32 s2, s2, 2")
        e("  s_mul_i32 s3, s3, 112")
        e("  s_add_u32 s2, s2, s3")
    elif chmap == "p5":
        e("  s_and_b32 s3, s2, 3")
        e("  s_mul_i32 s3, s3, 112")
        e("  s_lshr_b32 s12, s2, 2              ; 2j+s")
        e("  s_and_b32 s13, s12, 1")
        e("  s_lshl_b32 s13, s13, 5")
        e("  s_lshr_b32 s14, s2, 3")
        e("  s_add_u32 s13, s13, s14            ; 32s+j")
        e("  s_cmp_lt_u32 s14, 32")
        e("  s_cselect_b32 s2, s13, s12")
        e("  s_add_u32 s2, s2, s3")
    elif chmap == "r32":
        e("  s_and_b32 s3, s2, 7")
        e("  s_lshr_b32 s14, s2, 3")
        e("  s_cmp_lt_u32 s14, 32")
        e("  s_cselect_b32 s12, 32, 24")
        e("  s_cselect_b32 s13, 0, 224")
        e("  s_mul_i32 s3, s3, s12")
        e("  s_add_u32 s2, s3, s13")
        e("  s_add_u32 s2, s2, s14")
    elif chmap == "blk2":
        e("  s_bfe_u32 s3, s2, 0x20001")
        e("  s_mul_i32 s3, s3, 112")
        e("  s_and_b32 s12, s2, 1")
        e("  s_lshr_b32 s2, s2, 3")
        e("  s_lshl_b32 s2, s2, 1")
        e("  s_add_u32 s2, s2, s12")
        e("  s_add_u32 s2, s2, s3")
    elif chmap == "cu2":
        e("  s_and_b32 s3, s2, 7")
        e("  s_mul_i32 s3, s3, 56")
        e("  s_lshr_b32 s14, s2, 3")
        e("  s_lshl_b32 s12, s14, 1             ; j<24: 2j")
        e("  s_add_u32 s13, s14, 24             ; 24<=j<32: j+24")
        e("  s_cmp_lt_u32 s14, 24")
        e("  s_cselect_b32 s12, s12, s13")
        e("  s_lshl_b32 s13, s14, 1")
        e("  s_sub_u32 s13, s13, 63             ; j>=32: 2(j-32)+1")
        e("  s_cmp_lt_u32 s14, 32")
        e("  s_cselect_b32 s2, s12, s13")
        e("  s_add_u32 s2, s2, s3")
    e("  s_lshl_b32 s3, s2, 17")
    ngroups = (L + 7) // 8
    if layout == "wave":
        sh = {8: 7, 16: 8, 32: 9}[L]
        e("  v_and_b32 v2, 63, v0")
        e("  v_and_b32 v1, 0x3c0, v0")
        e("  s_add_u32 s3, s3, 4096")
        e("  v_lshlrev_b32 v2, 4, v2")
        e(f"  v_lshl_add_u32 v1, v1, {sh}, v2")
        e("  v_add_u32 v1, s3, v1")
        for gi in range(1, ngroups):
            e(f"  v_add_u32 v{1+gi}, {8192*gi}, v1")
        def addr(i):
            return f"v{1 + i//8}", (i % 8) * 1024 - 4096
    else:
        raise SystemExit("layout")
    e("  s_lshr_b32 s12, s2, 1")
    e("  s_lshl_b32 s12, s12, 2")
    e("  s_waitcnt lgkmcnt(0)")
    if delay:
        e("  s_memtime s[20:21]")
        e("  s_waitcnt lgkmcnt(0)")
        e("L_delay:")
        e("  s_memtime s[22:23]")
        e("  s_waitcnt lgkmcnt(0)")
        e("  s_sub_u32 s22, s22, s20")
        e(f"  s_cmp_lt_u32 s22, {delay}")
        e("  s_cbranch_scc1 L_delay")
    if prof:
        e("  s_memrealtime s[26:27]")
    if "x" in pf: e("  s_load_dword s20, s[4:5], s3")
    if "o" in pf: e("  s_load_dword s21, s[10:11], s3")
    if "v" in pf: e("  global_load_dword v6, v1, s[10:11]")
    for i in range(L):
        v, off = addr(i)
        e(f"  global_load_dwordx4 v[{D0+4*i}:{D0+4*i+3}], {v}, s[4:5] offset:{off} {ldf}")
    if prio == 1: e("  s_setprio 0")
    e("  s_load_dword s14, s[6:7], s12           ; g pair")
    e("  s_load_dword s15, s[8:9], s12           ; b pair")
    e("  s_mov_b32 s13, 0xffff0000")
    if "v" in pf: e(f"  s_waitcnt vmcnt({L})")
    e("  v_mov_b32 v6, 0")
    e("  v_mov_b32 v7, 0")
    e("  v_mov_b32 v8, 0")
    e("  v_mov_b32 v9, 0")
    e("  v_lshrrev_b32 v5, 6, v0                 ; wave id")
    e("  v_lshlrev_b32 v5, 3, v5                 ; lds addr of this wave's pair")
    e(f"  v_and_b32 v0, {NW-1}, v0")
    e("  v_lshlrev_b32 v0, 3, v0")
    for i in range(L):
        e(f"  s_waitcnt vmcnt({L-1-i})")
        if prof and i == 0:
            e("  s_memrealtime s[28:29]")
        if prof and i == L-1:
            e("  s_memrealtime s[30:31]")
        if i == 0:
            e(f"  v_readfirstlane_b32 s16, v{D0}")
            e("  s_lshl_b32 s16, s16, 16                 ; K = first element of the wave")
        for j in range(4):
            d = D0 + 4*i + j
            t = 10 + 2*(j & 1)
            e(f"  v_lshlrev_b32 v{t}, 16, v{d}")
            e(f"  v_and_b32 v{t+1}, s13, v{d}")
            e(f"  v_pk_add_f32 v[{t}:{t+1}], v[{t}:{t+1}], s[16:17] op_sel_hi:[1,0] neg_lo:[0,1] neg_hi:[0,1]")
            e(f"  v_pk_add_f32 v[6:7], v[6:7], v[{t}:{t+1}]")
            e(f"  v_pk_fma_f32 v[8:9], v[{t}:{t+1}], v[{t}:{t+1}], v[8:9]")
    e("  v_add_f32 v6, v6, v7                    ; S")
    e("  v_add_f32 v7, v8, v9                    ; Q")
    e("  s_nop 0")
    for dpp in ["quad_perm:[1,0,3,2] row_mask:0xf bank_mask:0xf", "quad_perm:[2,3,0,1] row_mask:0xf bank_mask:0xf",
                "row_half_mirror row_mask:0xf bank_mask:0xf", "row_mirror row_mask:0xf bank_mask:0xf",
                "row_bcast:15 row_mask:0xa bank_mask:0xf", "row_bcast:31 row_mask:0xc bank_mask:0xf"]:
        e(f"  v_add_f32_dpp v6, v6, v6 {dpp}")
        e(f"  v_add_f32_dpp v7, v7, v7 {dpp}")
        e("  s_nop 0")
    import struct
    def f2h(x): return "0x%08x" % struct.unpack("<I", struct.pack("<f", x))[0]
    e(f"  v_mul_f32 v8, {f2h(1.0/NPW)}, v6        ; S/n")
    e("  v_fma_f32 v7, -v8, v6, v7               ; M2")
    e("  v_add_f32 v6, s16, v8                   ; wave mean")
    e("  s_mov_b32 exec_lo, 0")
    e("  s_brev_b32 exec_hi, 1")
    e("  ds_write_b64 v5, v[6:7]")
    e("  s_mov_b64 exec, -1")
    e("  s_waitcnt lgkmcnt(0)")
    e("  s_barrier")
    if prof:
        e("  s_memrealtime s[32:33]")
    e("  ds_read_b64 v[6:7], v0")
    e("  s_bitcmp1_b32 s2, 0")
    e("  s_cselect_b32 s17, 0, 16")
    e("  s_lshl_b32 s14, s14, s17")
    e("  s_lshl_b32 s15, s15, s17")
    e("  s_and_b32 s14, s14, s13                 ; g as f32")
    e("  s_and_b32 s15, s15, s13                 ; b as f32")
    steps = {16: 4, 8: 3, 4: 2}[NW]
    dpps = ["quad_perm:[1,0,3,2] row_mask:0xf bank_mask:0xf", "quad_perm:[2,3,0,1] row_mask:0xf bank_mask:0xf",
            "row_half_mirror row_mask:0xf bank_mask:0xf", "row_mirror row_mask:0xf bank_mask:0xf"][:steps]
    e("  s_waitcnt lgkmcnt(0)")
    src = "v6"
    for dpp in dpps:
        e(f"  v_add_f32_dpp v8, {src}, {src} {dpp}")
        e("  s_nop 1")
        src = "v8"
    e(f"  v_mul_f32 v8, {f2h(1.0/NW)}, v8          ; mu")
    e("  v_sub_f32 v6, v6, v8                    ; m_w - mu")
    e(f"  v_mul_f32 v9, {f2h(float(NPW))}, v6")
    e("  v_fmac_f32 v7, v9, v6                   ; M2_w + n*(m_w-mu)^2")
    e("  v_cvt_pk_bf16_f32 v10, v8, v8")
    e("  v_and_b32 v10, s13, v10")
    for dpp in dpps:
        e(f"  v_add_f32_dpp v7, v7, v7 {dpp}")
        e("  s_nop 1")
    e("  v_sub_f32 v8, v8, v10")
    e("  v_mul_f32 v8, v8, v8")
    e(f"  v_fmac_f32 v8, {f2h(1.0/65536)}, v7")
    e("  v_max_f32 v8, 0, v8")
    e("  v_cvt_pk_bf16_f32 v8, v8, v8")
    e("  v_and_b32 v8, s13, v8")
    e(f"  v_add_f32 v8, {f2h(1e-5)}, v8")
    e("  v_cvt_pk_bf16_f32 v8, v8, v8")
    e("  v_and_b32 v8, s13, v8")
    e("  v_sqrt_f32 v8, v8")
    e("  s_nop 0")
    e("  v_cvt_pk_bf16_f32 v8, v8, v8")
    e("  v_and_b32 v8, s13, v8")
    e("  v_rcp_f32 v8, v8")
    e("  v_mov_b32 v9, s15                       ; b")
    e("  v_mul_f32 v8, s14, v8                   ; scale = g / s")
    if prio == 2: e("  s_setprio 0")
    for i in range(L):
        for j in range(4):
            d = D0 + 4*i + j
            t = 12 + 2*(j & 1)
            e(f"  v_lshlrev_b32 v{t}, 16, v{d}")
            e(f"  v_and_b32 v{t+1}, s13, v{d}")
            e(f"  v_pk_add_f32 v[{t}:{t+1}], v[{t}:{t+1}], v[10:11] op_sel_hi:[1,0] neg_lo:[0,1] neg_hi:[0,1]")
            e(f"  v_pk_fma_f32 v[{t}:{t+1}], v[{t}:{t+1}], v[8:9], v[8:9] op_sel:[0,0,1] op_sel_hi:[1,0,1]")
            e(f"  v_cvt_pk_bf16_f32 v{d}, v{t}, v{t+1}")
        v, off = addr(i)
        e(f"  global_store_dwordx4 {v}, v[{D0+4*i}:{D0+4*i+3}], s[10:11] offset:{off} {stf}")
    if prof:
        e("  s_memrealtime s[34:35]")
        e("  s_waitcnt vmcnt(0)")
        e("  s_memrealtime s[42:43]")
        e("  s_memtime s[44:45]")
        e("  s_getreg_b32 s46, hwreg(HW_REG_XCC_ID)")
        e("  s_getreg_b32 s47, hwreg(HW_REG_HW_ID)")
        e("  s_waitcnt lgkmcnt(0)")
        if amp:
            a0, a1, k = amp
            regs = [24, 26, 28, 30, 32, 34, 42]
            e(f"  s_sub_u32 s20, s{regs[a1]}, s{regs[a0]}")
            e(f"  s_mul_i32 s20, s20, {k}")
            e("  s_min_u32 s20, s20, 50000")
            e("L_amp:")
            e("  s_memrealtime s[22:23]")
            e("  s_waitcnt lgkmcnt(0)")
            e("  s_sub_u32 s22, s22, s42")
            e("  s_cmp_lt_u32 s22, s20")
            e("  s_cbranch_scc1 L_amp")
            e("  s_endpgm")
        e("  s_sub_u32 s44, s44, s40")
        e(f"  s_mul_i32 s3, s19, {NW*64}")
        e("  v_lshlrev_b32 v5, 3, v5")
        e("  v_add_u32 v5, s3, v5")
        for k, r in enumerate([24, 26, 28, 30]):
            e(f"  v_mov_b32 v{8+k}, s{r}")
        for k, r in enumerate([32, 34, 42, 44]):
            e(f"  v_mov_b32 v{12+k}, s{r}")
        e("  s_mov_b64 exec, 1")
        e("  global_store_dwordx4 v5, v[8:11], s[38:39]")
        e("  global_store_dwordx4 v5, v[12:15], s[38:39] offset:16")
        e("  v_mov_b32 v16, s46")
        e("  v_mov_b32 v17, s47")
        e("  global_store_dwordx2 v5, v[16:17], s[38:39] offset:32")
        if prof == 2:
            e("  v_mov_b32 v0, 0")
            e("  v_not_b32 v8, v8")
            e("  global_atomic_umax v0, v8, s[36:37]")
            e("  global_atomic_umax v0, v14, s[36:37] offset:4")
            e("  global_atomic_umax v0, v15, s[36:37] offset:8")
            e("  v_sub_u32 v14, v14, v9")
            e("  global_atomic_umax v0, v14, s[36:37] offset:12")
    e("L_end:")
    e("  s_endpgm")
    nv = D0 + 4*L
    e('.section .rodata,"a"')
    e(".p2align 6")
    e(f".amdhsa_kernel {name}")
    e(f"  .amdhsa_next_free_vgpr {nv}")
    e(f"  .amdhsa_next_free_sgpr {48 if prof else 24}")
    e(f"  .amdhsa_accum_offset {(nv+3)//4*4}")
    e("  .amdhsa_group_segment_fixed_size 0")
    e("  .amdhsa_kernarg_size 48")
    e("  .amdhsa_user_sgpr_count 2")
    e("  .amdhsa_user_sgpr_kernarg_segment_ptr 1")
    e("  .amdhsa_system_sgpr_workgroup_id_x 1")
    e("  .amdhsa_float_denorm_mode_32 3")
    e(".end_amdhsa_kernel")
    return "\n".join(o) + "\n"

if __name__ == "__main__":
    ap = argparse.ArgumentParser()
    ap.add_argument("--nt", type=int, default=1024)
    ap.add_argument("--layout", default="wave")
    ap.add_argument("--ldf", default="")
    ap.add_argument("--stf", default="")
    ap.add_argument("--lds", type=int, default=0)
    ap.add_argument("--prof", type=int, default=0)
    ap.add_argument("--delay", type=int, default=0)
    ap.add_argument("--chmap", default="")
    ap.add_argument("--prio", type=int, default=0)
    ap.add_argument("--amp", default="")
    ap.add_argument("--pf", default="")
    ap.add_argument("-o", default="-")
    a = ap.parse_args()
    s = gen(a.nt, a.layout, a.ldf, a.stf, a.lds, a.prof, a.delay, a.chmap, a.prio, tuple(map(int,a.amp.split(","))) if a.amp else None, a.pf)
    if a.o == "-": sys.stdout.write(s)
    else: open(a.o, "w").write(s)
```

```python
import sys, argparse

def gen(nt=1024, layout="wave", ldf="", stf="", lds=0, prof=0, delay=0, chmap="", prio=0, amp=None, pf="", warm=0, nostore=0, fast="", name="standalone__instancenorm__prompt_kernel"):
    C = 448
    CHB = 131072
    L = CHB // (nt * 16)
    NW = nt // 64
    NPW = 65536 // NW
    D0 = 16
    o = []
    e = o.append
    ldsz = max(lds, 128)
    G = C
    if chmap.startswith("bal"):
        kk = int(chmap[3:]); G = 8*(56+abs(kk))
    e(f"; @launch grid=({G},1,1) block=({nt},1,1) lds={ldsz}")
    e('.amdgcn_target "amdgcn-amd-amdhsa--gfx950"')
    e(".text")
    e(f".globl {name}")
    e(".p2align 8")
    e(f".type {name},@function")
    e(f"{name}:")
    if prof:
        e("  s_memrealtime s[24:25]")
        e("  s_memtime s[40:41]")
        e("  s_load_dwordx4 s[36:39], s[0:1], 32")
    e("  s_load_dwordx8 s[4:11], s[0:1], 0      ; x, g, b, out")
    if prio: e("  s_setprio 3")
    e(f"  s_cmp_ge_u32 s2, {G}")
    e("  s_cbranch_scc1 L_end")
    if warm:
        e(f"  s_cmp_ge_u32 s2, {warm}")
        e("  s_cbranch_scc1 L_nowarm")
        e("  s_getpc_b64 s[22:23]")
        e("L_pc:")
        e("  v_lshlrev_b32 v10, 6, v0")
        e("  v_min_u32 v10, L_end-L_pc, v10")
        e("  global_load_dword v11, v10, s[22:23]")
        e("L_nowarm:")
    if prof:
        e("  s_mov_b32 s19, s2")
    if chmap == "xor1":
        e("  s_xor_b32 s2, s2, 1")
    elif chmap == "blk":
        e("  s_and_b32 s3, s2, 7")
        e("  s_lshr_b32 s2, s2, 3")
        e("  s_mul_i32 s3, s3, 56")
        e("  s_add_u32 s2, s2, s3")
    elif chmap.startswith("bal"):
        e("  s_bfe_u32 s3, s2, 0x20001")
        e("  s_mul_i32 s3, s3, 112")
        e("  s_bitcmp1_b32 s2, 0")
        e(f"  s_cselect_b32 s12, {56-kk}, {56+kk}")
        e(f"  s_cselect_b32 s13, {56+kk}, 0")
        e("  s_lshr_b32 s2, s2, 3")
        e("  s_cmp_ge_u32 s2, s12")
        e("  s_cbranch_scc1 L_end")
        e("  s_add_u32 s2, s2, s3")
        e("  s_add_u32 s2, s2, s13")
    elif chmap == "pair":
        e("  s_and_b32 s3, s2, 3")
        e("  s_lshr_b32 s2, s2, 2")
        e("  s_mul_i32 s3, s3, 112")
        e("  s_add_u32 s2, s2, s3")
    elif chmap == "p5":
        e("  s_and_b32 s3, s2, 3")
        e("  s_mul_i32 s3, s3, 112")
        e("  s_lshr_b32 s12, s2, 2              ; 2j+s")
        e("  s_and_b32 s13, s12, 1")
        e("  s_lshl_b32 s13, s13, 5")
        e("  s_lshr_b32 s14, s2, 3")
        e("  s_add_u32 s13, s13, s14            ; 32s+j")
        e("  s_cmp_lt_u32 s14, 32")
        e("  s_cselect_b32 s2, s13, s12")
        e("  s_add_u32 s2, s2, s3")
    elif chmap == "r32":
        e("  s_and_b32 s3, s2, 7")
        e("  s_lshr_b32 s14, s2, 3")
        e("  s_cmp_lt_u32 s14, 32")
        e("  s_cselect_b32 s12, 32, 24")
        e("  s_cselect_b32 s13, 0, 224")
        e("  s_mul_i32 s3, s3, s12")
        e("  s_add_u32 s2, s3, s13")
        e("  s_add_u32 s2, s2, s14")
    elif chmap == "blk2":
        e("  s_bfe_u32 s3, s2, 0x20001")
        e("  s_mul_i32 s3, s3, 112")
        e("  s_and_b32 s12, s2, 1")
        e("  s_lshr_b32 s2, s2, 3")
        e("  s_lshl_b32 s2, s2, 1")
        e("  s_add_u32 s2, s2, s12")
        e("  s_add_u32 s2, s2, s3")
    elif chmap == "cu2":
        e("  s_and_b32 s3, s2, 7")
        e("  s_mul_i32 s3, s3, 56")
        e("  s_lshr_b32 s14, s2, 3")
        e("  s_lshl_b32 s12, s14, 1             ; j<24: 2j")
        e("  s_add_u32 s13, s14, 24             ; 24<=j<32: j+24")
        e("  s_cmp_lt_u32 s14, 24")
        e("  s_cselect_b32 s12, s12, s13")
        e("  s_lshl_b32 s13, s14, 1")
        e("  s_sub_u32 s13, s13, 63             ; j>=32: 2(j-32)+1")
        e("  s_cmp_lt_u32 s14, 32")
        e("  s_cselect_b32 s2, s12, s13")
        e("  s_add_u32 s2, s2, s3")
    e("  s_lshl_b32 s3, s2, 17")
    ngroups = (L + 7) // 8
    if layout == "wave":
        sh = {8: 7, 16: 8, 32: 9}[L]
        e("  v_and_b32 v2, 63, v0")
        e("  v_and_b32 v1, 0x3c0, v0")
        e("  s_add_u32 s3, s3, 4096")
        e("  v_lshlrev_b32 v2, 4, v2")
        e(f"  v_lshl_add_u32 v1, v1, {sh}, v2")
        e("  v_add_u32 v1, s3, v1")
        for gi in range(1, ngroups):
            e(f"  v_add_u32 v{1+gi}, {8192*gi}, v1")
        def addr(i):
            return f"v{1 + i//8}", (i % 8) * 1024 - 4096
    elif layout.startswith("s"):
        st = int(layout[1:]) * 1024
        assert L == 32
        e("  v_and_b32 v2, 63, v0")
        e("  v_lshrrev_b32 v1, 6, v0")
        e("  s_add_u32 s3, s3, 4096")
        e("  v_lshlrev_b32 v2, 4, v2")
        if st == 32768:
            e("  v_lshl_add_u32 v1, v1, 13, v2")
        elif st == 16384:
            e("  v_and_b32 v3, 1, v1"); e("  v_lshrrev_b32 v1, 1, v1"); e("  v_lshl_add_u32 v2, v3, 13, v2"); e("  v_lshl_add_u32 v1, v1, 16, v2")
        elif st == 8192:
            e("  v_lshl_add_u32 v1, v1, 15, v2")
        e("  v_add_u32 v1, s3, v1")
        for gi in range(1, 4):
            e(f"  v_add_u32 v{1+gi}, {st*gi}, v1")
        def addr(i):
            return f"v{1 + i%4}", (i // 4) * 1024 - 4096
    elif layout == "col":
        e("  v_and_b32 v2, 63, v0")
        e("  v_lshrrev_b32 v1, 6, v0")
        e("  s_add_u32 s3, s3, 4096")
        e("  v_lshlrev_b32 v2, 4, v2")
        e("  v_lshl_add_u32 v1, v1, 13, v2")
        e("  v_add_u32 v1, s3, v1")
        for gi in range(1, 4):
            e(f"  v_add_u32 v{1+gi}, {32768*gi}, v1")
        def addr(i):
            return f"v{1 + i//8}", (i % 8) * 1024 - 4096
    else:
        raise SystemExit("layout")
    e("  s_lshr_b32 s12, s2, 1")
    e("  s_lshl_b32 s12, s12, 2")
    e("  s_waitcnt lgkmcnt(0)")
    if delay:
        e("  s_memtime s[20:21]")
        e("  s_waitcnt lgkmcnt(0)")
        e("L_delay:")
        e("  s_memtime s[22:23]")
        e("  s_waitcnt lgkmcnt(0)")
        e("  s_sub_u32 s22, s22, s20")
        e(f"  s_cmp_lt_u32 s22, {delay}")
        e("  s_cbranch_scc1 L_delay")
    if prof:
        e("  s_memrealtime s[26:27]")
    if "x" in pf: e("  s_load_dword s20, s[4:5], s3")
    if "o" in pf: e("  s_load_dword s21, s[10:11], s3")
    if "v" in pf: e("  global_load_dword v6, v1, s[10:11]")
    for i in range(L):
        v, off = addr(i)
        e(f"  global_load_dwordx4 v[{D0+4*i}:{D0+4*i+3}], {v}, s[4:5] offset:{off} {ldf}")
    if prio == 1: e("  s_setprio 0")
    e("  s_load_dword s14, s[6:7], s12           ; g pair")
    e("  s_load_dword s15, s[8:9], s12           ; b pair")
    e("  s_mov_b32 s13, 0xffff0000")
    if "v" in pf: e(f"  s_waitcnt vmcnt({L})")
    e("  v_mov_b32 v6, 0")
    e("  v_mov_b32 v7, 0")
    e("  v_mov_b32 v8, 0")
    e("  v_mov_b32 v9, 0")
    e("  v_lshrrev_b32 v5, 6, v0                 ; wave id")
    e("  v_lshlrev_b32 v5, 3, v5                 ; lds addr of this wave's pair")
    e(f"  v_and_b32 v0, {NW-1}, v0")
    e("  v_lshlrev_b32 v0, 3, v0")
    for i in range(L):
        e(f"  s_waitcnt vmcnt({L-1-i})")
        if prof and i == 0:
            e("  s_memrealtime s[28:29]")
        if prof and i == L-1:
            e("  s_memrealtime s[30:31]")
        if "d" in fast:
            if i == 0:
                e("  s_mov_b32 s16, 0"); e("  s_mov_b32 s18, 0x3f803f80")
            for j in range(4):
                d = D0 + 4*i + j
                e(f"  v_dot2c_f32_bf16 v{6+(j&1)}, s18, v{d}")
                e(f"  v_dot2c_f32_bf16 v{8+(j&1)}, v{d}, v{d}")
            if i == L-1: e("  s_nop 2")
            continue
        if i == 0:
            e(f"  v_readfirstlane_b32 s16, v{D0}")
            e("  s_lshl_b32 s16, s16, 16                 ; K = first element of the wave")
        for j in range(4):
            d = D0 + 4*i + j
            t = 10 + 2*(j & 1)
            e(f"  v_lshlrev_b32 v{t}, 16, v{d}")
            e(f"  v_and_b32 v{t+1}, s13, v{d}")
            e(f"  v_pk_add_f32 v[{t}:{t+1}], v[{t}:{t+1}], s[16:17] op_sel_hi:[1,0] neg_lo:[0,1] neg_hi:[0,1]")
            e(f"  v_pk_add_f32 v[6:7], v[6:7], v[{t}:{t+1}]")
            e(f"  v_pk_fma_f32 v[8:9], v[{t}:{t+1}], v[{t}:{t+1}], v[8:9]")
    e("  v_add_f32 v6, v6, v7                    ; S")
    e("  v_add_f32 v7, v8, v9                    ; Q")
    e("  s_nop 0")
    for dpp in ["quad_perm:[1,0,3,2] row_mask:0xf bank_mask:0xf", "quad_perm:[2,3,0,1] row_mask:0xf bank_mask:0xf",
                "row_half_mirror row_mask:0xf bank_mask:0xf", "row_mirror row_mask:0xf bank_mask:0xf",
                "row_bcast:15 row_mask:0xa bank_mask:0xf", "row_bcast:31 row_mask:0xc bank_mask:0xf"]:
        e(f"  v_add_f32_dpp v6, v6, v6 {dpp}")
        e(f"  v_add_f32_dpp v7, v7, v7 {dpp}")
        e("  s_nop 0")
    import struct
    def f2h(x): return "0x%08x" % struct.unpack("<I", struct.pack("<f", x))[0]
    e(f"  v_mul_f32 v8, {f2h(1.0/NPW)}, v6        ; S/n")
    e("  v_fma_f32 v7, -v8, v6, v7               ; M2")
    e("  v_add_f32 v6, s16, v8                   ; wave mean")
    e("  s_mov_b32 exec_lo, 0")
    e("  s_brev_b32 exec_hi, 1")
    e("  ds_write_b64 v5, v[6:7]")
    e("  s_mov_b64 exec, -1")
    e("  s_waitcnt lgkmcnt(0)")
    e("  s_barrier")
    if prof:
        e("  s_memrealtime s[32:33]")
    e("  ds_read_b64 v[6:7], v0")
    e("  s_bitcmp1_b32 s2, 0")
    e("  s_cselect_b32 s17, 0, 16")
    e("  s_lshl_b32 s14, s14, s17")
    e("  s_lshl_b32 s15, s15, s17")
    e("  s_and_b32 s14, s14, s13                 ; g as f32")
    e("  s_and_b32 s15, s15, s13                 ; b as f32")
    steps = {16: 4, 8: 3, 4: 2}[NW]
    dpps = ["quad_perm:[1,0,3,2] row_mask:0xf bank_mask:0xf", "quad_perm:[2,3,0,1] row_mask:0xf bank_mask:0xf",
            "row_half_mirror row_mask:0xf bank_mask:0xf", "row_mirror row_mask:0xf bank_mask:0xf"][:steps]
    e("  s_waitcnt lgkmcnt(0)")
    src = "v6"
    for dpp in dpps:
        e(f"  v_add_f32_dpp v8, {src}, {src} {dpp}")
        e("  s_nop 1")
        src = "v8"
    e(f"  v_mul_f32 v8, {f2h(1.0/NW)}, v8          ; mu")
    e("  v_sub_f32 v6, v6, v8                    ; m_w - mu")
    e(f"  v_mul_f32 v9, {f2h(float(NPW))}, v6")
    e("  v_fmac_f32 v7, v9, v6                   ; M2_w + n*(m_w-mu)^2")
    e("  v_cvt_pk_bf16_f32 v10, v8, v8")
    e("  v_and_b32 v10, s13, v10")
    for dpp in dpps:
        e(f"  v_add_f32_dpp v7, v7, v7 {dpp}")
        e("  s_nop 1")
    e("  v_sub_f32 v8, v8, v10")
    e("  v_mul_f32 v8, v8, v8")
    e(f"  v_fmac_f32 v8, {f2h(1.0/65536)}, v7")
    e("  v_max_f32 v8, 0, v8")
    e("  v_cvt_pk_bf16_f32 v8, v8, v8")
    e("  v_and_b32 v8, s13, v8")
    e(f"  v_add_f32 v8, {f2h(1e-5)}, v8")
    e("  v_cvt_pk_bf16_f32 v8, v8, v8")
    e("  v_and_b32 v8, s13, v8")
    e("  v_sqrt_f32 v8, v8")
    e("  s_nop 0")
    e("  v_cvt_pk_bf16_f32 v8, v8, v8")
    e("  v_and_b32 v8, s13, v8")
    e("  v_rcp_f32 v8, v8")
    e("  v_mov_b32 v9, s15                       ; b")
    e("  v_mul_f32 v8, s14, v8                   ; scale = g / s")
    if prio == 2: e("  s_setprio 0")
    if "n" in fast: e("  v_fma_f32 v9, -v10, v8, v9")
    for i in range(L):
        for j in range(4):
            d = D0 + 4*i + j
            t = 12 + 2*(j & 1)
            e(f"  v_lshlrev_b32 v{t}, 16, v{d}")
            e(f"  v_and_b32 v{t+1}, s13, v{d}")
            if "n" not in fast: e(f"  v_pk_add_f32 v[{t}:{t+1}], v[{t}:{t+1}], v[10:11] op_sel_hi:[1,0] neg_lo:[0,1] neg_hi:[0,1]")
            e(f"  v_pk_fma_f32 v[{t}:{t+1}], v[{t}:{t+1}], v[8:9], v[8:9] op_sel:[0,0,1] op_sel_hi:[1,0,1]")
            e(f"  v_cvt_pk_bf16_f32 v{d}, v{t}, v{t+1}")
        v, off = addr(i)
        if nostore: continue
        e(f"  global_store_dwordx4 {v}, v[{D0+4*i}:{D0+4*i+3}], s[10:11] offset:{off} {stf}")
    if prof:
        e("  s_memrealtime s[34:35]")
        e("  s_waitcnt vmcnt(0)")
        e("  s_memrealtime s[42:43]")
        e("  s_memtime s[44:45]")
        e("  s_getreg_b32 s46, hwreg(HW_REG_XCC_ID)")
        e("  s_getreg_b32 s47, hwreg(HW_REG_HW_ID)")
        e("  s_waitcnt lgkmcnt(0)")
        if amp:
            a0, a1, k = amp
            regs = [24, 26, 28, 30, 32, 34, 42]
            e(f"  s_sub_u32 s20, s{regs[a1]}, s{regs[a0]}")
            e(f"  s_mul_i32 s20, s20, {k}")
            e("  s_min_u32 s20, s20, 50000")
            e("L_amp:")
            e("  s_memrealtime s[22:23]")
            e("  s_waitcnt lgkmcnt(0)")
            e("  s_sub_u32 s22, s22, s42")
            e("  s_cmp_lt_u32 s22, s20")
            e("  s_cbranch_scc1 L_amp")
            e("  s_endpgm")
        e("  s_sub_u32 s44, s44, s40")
        e(f"  s_mul_i32 s3, s19, {NW*64}")
        e("  v_lshlrev_b32 v5, 3, v5")
        e("  v_add_u32 v5, s3, v5")
        for k, r in enumerate([24, 26, 28, 30]):
            e(f"  v_mov_b32 v{8+k}, s{r}")
        for k, r in enumerate([32, 34, 42, 44]):
            e(f"  v_mov_b32 v{12+k}, s{r}")
        e("  s_mov_b64 exec, 1")
        e("  global_store_dwordx4 v5, v[8:11], s[38:39]")
        e("  global_store_dwordx4 v5, v[12:15], s[38:39] offset:16")
        e("  v_mov_b32 v16, s46")
        e("  v_mov_b32 v17, s47")
        e("  global_store_dwordx2 v5, v[16:17], s[38:39] offset:32")
        if prof == 2:
            e("  v_mov_b32 v0, 0")
            e("  v_not_b32 v8, v8")
            e("  global_atomic_umax v0, v8, s[36:37]")
            e("  global_atomic_umax v0, v14, s[36:37] offset:4")
            e("  global_atomic_umax v0, v15, s[36:37] offset:8")
            e("  v_sub_u32 v14, v14, v9")
            e("  global_atomic_umax v0, v14, s[36:37] offset:12")
    e("L_end:")
    e("  s_endpgm")
    nv = D0 + 4*L
    e('.section .rodata,"a"')
    e(".p2align 6")
    e(f".amdhsa_kernel {name}")
    e(f"  .amdhsa_next_free_vgpr {nv}")
    e(f"  .amdhsa_next_free_sgpr {48 if prof else 24}")
    e(f"  .amdhsa_accum_offset {(nv+3)//4*4}")
    e("  .amdhsa_group_segment_fixed_size 0")
    e("  .amdhsa_kernarg_size 48")
    e("  .amdhsa_user_sgpr_count 2")
    e("  .amdhsa_user_sgpr_kernarg_segment_ptr 1")
    e("  .amdhsa_system_sgpr_workgroup_id_x 1")
    e("  .amdhsa_float_denorm_mode_32 3")
    e(".end_amdhsa_kernel")
    return "\n".join(o) + "\n"

if __name__ == "__main__":
    ap = argparse.ArgumentParser()
    ap.add_argument("--nt", type=int, default=1024)
    ap.add_argument("--layout", default="wave")
    ap.add_argument("--ldf", default="")
    ap.add_argument("--stf", default="")
    ap.add_argument("--lds", type=int, default=0)
    ap.add_argument("--prof", type=int, default=0)
    ap.add_argument("--delay", type=int, default=0)
    ap.add_argument("--chmap", default="")
    ap.add_argument("--prio", type=int, default=0)
    ap.add_argument("--amp", default="")
    ap.add_argument("--pf", default="")
    ap.add_argument("--warm", type=int, default=0)
    ap.add_argument("--nostore", type=int, default=0)
    ap.add_argument("--fast", default="")
    ap.add_argument("-o", default="-")
    a = ap.parse_args()
    s = gen(a.nt, a.layout, a.ldf, a.stf, a.lds, a.prof, a.delay, a.chmap, a.prio, tuple(map(int,a.amp.split(","))) if a.amp else None, a.pf, a.warm, a.nostore, a.fast)
    if a.o == "-": sys.stdout.write(s)
    else: open(a.o, "w").write(s)
```

```python
import sys
import gen1
which, lg, mode = sys.argv[2], int(sys.argv[3]), sys.argv[4]
base = 4 if which=="x" else 10
main = gen1.gen(256, "wave", "nt", "sc1", 65536, 0, 0, "blk", 1)
lines = main.split("\n")
a="; @launch kernel=probe_kernel grid=(1,1,1) block=(64,1,1) lds=0"; b="; @launch kernel=standalone__instancenorm__prompt_kernel grid=(448,1,1) block=(256,1,1) lds=65536"
lines[0] = a+"\n"+b if mode!="last" else b+"\n"+a
n = (56<<20)>>lg; per=(1<<21)>>lg
o=[]; e=o.append
e(".text"); e(".globl probe_kernel"); e(".p2align 8"); e(".type probe_kernel,@function"); e("probe_kernel:")
e("  s_memrealtime s[46:47]")
e("  s_load_dwordx8 s[4:11], s[0:1], 0")
e("  s_load_dwordx2 s[12:13], s[0:1], 32")
e("  s_cmp_lg_u32 s2, 0"); e("  s_cbranch_scc1 P_end")
e("  s_waitcnt lgkmcnt(0)")
e("  s_mov_b32 s30, 0"); e("  s_mov_b32 s31, 0   ; previous"); e("  s_mov_b32 s32, 0"); e("  s_mov_b32 s33, 0")
e("  s_mov_b32 s14, 0")
e("P_chunk:")
e(f"  s_lshl_b32 s15, s14, {lg}")
e("  s_add_u32 s16, s15, 0x80"); e(f"  s_load_dword s17, s[{base}:{base+1}], s16"); e("  s_waitcnt lgkmcnt(0)")
e("  s_mov_b32 s18, 0x10000"); e("  s_mov_b32 s19, 0x10000"); e("  s_mov_b32 s20, 0")
e("P_smp:")
for par in (0,1):
    e("  s_lshr_b32 s16, s20, 1"); e("  s_lshl_b32 s16, s16, 14"); e("  s_and_b32 s21, s20, 1"); e("  s_lshl_b32 s21, s21, 12")
    e("  s_add_u32 s16, s16, s21"); e("  s_add_u32 s16, s16, s15"); e(f"  s_add_u32 s16, s16, {par*8192+0x300}")
    e(f"  s_load_dword s17, s[{base}:{base+1}], s16 glc"); e("  s_waitcnt lgkmcnt(0)")
    e("  s_memtime s[22:23]"); e("  s_waitcnt lgkmcnt(0)")
    e(f"  s_load_dword s17, s[{base}:{base+1}], s16 glc"); e("  s_waitcnt lgkmcnt(0)")
    e("  s_memtime s[24:25]"); e("  s_waitcnt lgkmcnt(0)")
    e("  s_sub_u32 s24, s24, s22"); e(f"  s_min_u32 s{18+par}, s{18+par}, s24")
e("  s_add_u32 s20, s20, 1"); e("  s_cmp_lt_u32 s20, 2"); e("  s_cbranch_scc1 P_smp")
e("  s_sub_i32 s21, s18, s19"); e("  s_abs_i32 s26, s21"); e("  s_cmp_lt_u32 s26, 80"); e("  s_addc_u32 s32, s32, 0")
e("  s_cmp_gt_i32 s21, 0"); e("  s_cselect_b32 s21, 1, 0")
e("  s_xor_b32 s26, s21, s31"); e("  s_mov_b32 s31, s21")
e(f"  s_and_b32 s27, s14, {per-1}"); e("  s_cselect_b32 s28, s26, 0"); e("  s_add_u32 s30, s30, s28")
e("  s_xor_b32 s26, s26, 1"); e(f"  s_and_b32 s27, s14, {per-1}"); e("  s_cselect_b32 s28, 0, s26"); e("  s_add_u32 s33, s33, s28")
e("  s_add_u32 s14, s14, 1"); e(f"  s_cmp_lt_u32 s14, {n}"); e("  s_cbranch_scc1 P_chunk")
for k,r in enumerate([30,32,33,18]): e(f"  v_mov_b32 v{4+k}, s{r}")
e("  v_mov_b32 v0, 0"); e("  s_mov_b64 exec, 1"); e("  global_store_dwordx4 v0, v[4:7], s[12:13]")
reg={"chg":30,"small":32,"bnd":33,"last":30}[mode]
e(f"  s_mul_i32 s44, s{reg}, 1000"); e(f"  s_add_u32 s44, s44, {150000 if lg>=18 else 500000}")
e("P_amp:")
e("  s_memrealtime s[24:25]"); e("  s_waitcnt lgkmcnt(0)"); e("  s_sub_u32 s24, s24, s46"); e("  s_cmp_lt_u32 s24, s44"); e("  s_cbranch_scc1 P_amp")
e("P_end:"); e("  s_endpgm")
e('.section .rodata,"a"'); e(".p2align 6"); e(".amdhsa_kernel probe_kernel")
e("  .amdhsa_next_free_vgpr 16"); e("  .amdhsa_next_free_sgpr 48"); e("  .amdhsa_accum_offset 16")
e("  .amdhsa_group_segment_fixed_size 0"); e("  .amdhsa_kernarg_size 48"); e("  .amdhsa_user_sgpr_count 2")
e("  .amdhsa_user_sgpr_kernarg_segment_ptr 1"); e("  .amdhsa_system_sgpr_workgroup_id_x 1"); e(".end_amdhsa_kernel")
open(sys.argv[1], "w").write("\n".join(lines) + "\n".join(o) + "\n")
```

```python
import sys, argparse, struct
def f2h(x): return "0x%08x" % struct.unpack("<I", struct.pack("<f", x))[0]
name="standalone__instancenorm__prompt_kernel"
TAGC = 0x6B43A900
PSTR = 4352
DP=["quad_perm:[1,0,3,2] row_mask:0xf bank_mask:0xf", "quad_perm:[2,3,0,1] row_mask:0xf bank_mask:0xf",
    "row_half_mirror row_mask:0xf bank_mask:0xf", "row_mirror row_mask:0xf bank_mask:0xf",
    "row_bcast:15 row_mask:0xa bank_mask:0xf", "row_bcast:31 row_mask:0xc bank_mask:0xf"]

def gen(nstat=24, khi=14, thr=40, limit=4096, lds=65536, dot=1, norm="5", warm=0, force=0, prof=0, hyb="k", dry=0, nblind=0, voff=128, wpair=0, tgate=0, tall=0, header=""):
    o=[]; e=o.append
    L=32; A0=16; D0=24; NPW=16384; nwg=448; V=36; PR=60; T0=D0+4*L
    def stamp(k):
        if prof: e(f"  s_memrealtime s[{PR+2*k}:{PR+2*k+1}]")
    def params():
        e("  v_cvt_pk_bf16_f32 v10, v8, v8")
        e("  v_and_b32 v10, s31, v10")
        e("  v_sub_f32 v8, v8, v10")
        e("  v_mul_f32 v8, v8, v8")
        e(f"  v_fmac_f32 v8, {f2h(1.0/65536)}, v7")
        e("  v_max_f32 v8, 0, v8")
        e("  v_cvt_pk_bf16_f32 v8, v8, v8")
        e("  v_and_b32 v8, s31, v8")
        e(f"  v_add_f32 v8, {f2h(1e-5)}, v8            ; + eps")
        e("  v_cvt_pk_bf16_f32 v8, v8, v8")
        e("  v_and_b32 v8, s31, v8")
        e("  v_sqrt_f32 v8, v8")
        e("  v_mov_b32 v9, s27                       ; b")
        e("  v_cvt_pk_bf16_f32 v8, v8, v8")
        e("  v_and_b32 v8, s31, v8")
        e("  v_rcp_f32 v8, v8")
        e("  s_nop 0")
        e("  v_mul_f32 v8, s35, v8")
    def gb(sel):
        e(f"  s_lshl_b32 s27, {sel}, 4")
        e("  s_xor_b32 s27, s27, 16")
        e("  s_lshl_b32 s35, s29, s27")
        e("  s_lshl_b32 s27, s30, s27")
        e("  s_and_b32 s35, s35, s31                 ; g")
        e("  s_and_b32 s27, s27, s31                 ; b")
    def merge(n):
        e("  v_sub_f32 v14, v12, v8")
        e("  v_add_f32 v8, v12, v8")
        e("  v_add_f32 v7, v13, v7")
        e("  v_mul_f32 v8, 0.5, v8")
        e("  v_mul_f32 v14, v14, v14")
        e(f"  v_fmac_f32 v7, {f2h(n/2.0)}, v14")
    if header: e(header.rstrip("\n"))
    e(f"; @launch grid=({nwg},1,1) block=(256,1,1) lds={max(lds,256)}")
    e('.amdgcn_target "amdgcn-amd-amdhsa--gfx950"')
    e(".text"); e(f".globl {name}"); e(".p2align 8"); e(f".type {name},@function"); e(f"{name}:")
    stamp(0)
    if tgate: e("  s_memrealtime s[84:85]")
    def addr(i): return f"v{A0+i//4}", (i%4)*1024
    def load(i):
        v,off=addr(i)
        e(f"  global_load_dwordx4 v[{D0+4*i}:{D0+4*i+3}], {v}, s[4:5] offset:{off} nt")
    def common(ws=1):
        if ws: e("  s_load_dwordx2 s[14:15], s[0:1], 40    ; ws")
        e("  v_readfirstlane_b32 s16, v2            ; wave")
        e("  s_movk_i32 s26, 0x1000")
        for k in range(1,8): e(f"  v_add_u32 v{A0+k}, s26, v{A0+k-1}")
        e("  s_mov_b32 s33, 0")
        if prof:
            e(f"  s_mov_b32 s{PR+14}, 0x7fffffff"); e(f"  s_mov_b32 s{PR+15}, 0x7fffffff"); e("  s_mov_b32 s34, 0")
            for r in (76,78,80,82): e(f"  s_mov_b32 s{r}, 0")
    e("  s_load_dwordx8 s[4:11], s[0:1], 0      ; x, g, b, out")
    e("  s_setprio 3")
    e("  s_and_b32 s17, s2, 3")
    e("  s_lshr_b32 s20, s2, 3                  ; j")
    e("  s_mul_i32 s22, s17, 56")
    e("  s_bfe_u32 s24, s2, 0x10002")
    e("  s_add_u32 s22, s22, s20                ; pair")
    e("  v_and_b32 v1, 63, v0")
    e("  v_lshrrev_b32 v2, 6, v0")
    e("  s_lshl1_add_u32 s27, s22, s24          ; channel")
    e("  v_lshlrev_b32 v1, 4, v1")
    e("  s_lshl_b32 s27, s27, 17")
    e(f"  v_lshl_add_u32 v{A0}, v2, 15, v1")
    e(f"  s_cmp_ge_u32 s20, {nstat}")
    e(f"  v_add_u32 v{A0}, s27, v{A0}")
    e("  s_cbranch_scc1 L_late")
    e("  s_waitcnt lgkmcnt(0)")
    stamp(1)
    for i in range(4): load(i)
    common(prof)
    e("L_go4:")
    for i in range(4,L): load(i)
    e("  s_branch L_stats")
    e("L_late:")
    e("  s_cmp_ge_u32 s20, 56")
    e("  s_cbranch_scc1 L_end")
    if warm:
        e(f"  s_cmp_ge_u32 s20, {nstat+warm}")
        e("  s_cbranch_scc1 L_nowarm")
        e("  s_getpc_b64 s[12:13]")
        e("L_pc:")
        e(f"  v_lshlrev_b32 v6, {5 if dot==1 else 6}, v0")
        e("  v_min_u32 v6, L_end-L_pc, v6")
        e("  v_mov_b32 v9, s13")
        e("  v_add_co_u32 v8, vcc, s12, v6")
        e("  s_nop 1")
        e("  v_addc_co_u32 v9, vcc, 0, v9, vcc")
        e("  global_load_dword v3, v[8:9], off")
        e("L_nowarm:")
    common()
    e("  s_lshl_b32 s23, s22, 18")
    e("  s_cmp_lg_u32 s16, 0")
    e("  s_cbranch_scc1 L_other")
    e("  s_lshr_b32 s21, s22, 3                 ; page")
    e(f"  s_mul_i32 s12, s21, {PSTR}")
    e("  s_mul_i32 s42, s2, 0x0b00")
    e("  s_and_b32 s43, s42, 0x1f00")
    e("  s_and_b32 s42, s42, 0xe000")
    e("  s_lshl1_add_u32 s42, s42, s43")
    e("  s_add_u32 s46, s42, s23")
    e("  s_lshl_b32 s42, s20, 12")
    e("  s_and_b32 s42, s42, 0x2000")
    e("  s_xor_b32 s43, s42, 0x2000")
    e("  s_xor_b32 s19, s24, s20")
    e("  s_and_b32 s19, s19, 1")
    e("  s_waitcnt lgkmcnt(0)")
    e("  s_cselect_b64 s[40:41], s[10:11], s[4:5]")
    e("  s_add_u32 s12, s14, s12")
    e("  s_addc_u32 s13, s15, 0")
    e("  s_and_b32 s47, s40, 0x3000")
    e("  s_sub_u32 s47, 0x4000, s47")
    e("  s_add_u32 s46, s46, s47")
    e("  s_add_u32 s40, s40, s46")
    e("  s_addc_u32 s41, s41, 0")
    e("  s_load_dword s28, s[12:13], 0 glc      ; epoch")
    e("  s_load_dword s44, s[40:41], s42 glc")
    e("  s_load_dword s44, s[40:41], s43 glc")
    if wpair==1:
        e("  s_lshl_b32 s45, s22, 6")
        e("  s_add_u32 s45, s45, 0x20000")
        e("  s_load_dword s44, s[14:15], s45 glc")
    e("@@MEASURE@@")
    e("L_stats:")
    e("  s_setprio 0")
    e("  s_lshl_b32 s27, s22, 2")
    e("  s_load_dword s29, s[6:7], s27")
    e("  s_load_dword s30, s[8:9], s27")
    e("  s_mov_b32 s31, 0xffff0000")
    if dot==1: e("  s_mov_b32 s48, 0x3f803f80              ; (1.0, 1.0)")
    if dot==2:
        e("  s_movk_i32 s50, 0x3f80                 ; (1.0, 0)")
        e("  s_mov_b32 s51, 1.0                     ; (0, 1.0)")
    for r in range(6,10): e(f"  v_mov_b32 v{r}, 0")
    for i in range(L):
        e(f"  s_waitcnt vmcnt({L-1-i})")
        if i==0: stamp(2)
        if i==L-1: stamp(3)
        if dot==1:
            for j in range(4):
                d=D0+4*i+j
                e(f"  v_dot2c_f32_bf16 v{6+(j&1)}, s48, v{d}")
                e(f"  v_dot2c_f32_bf16 v{8+(j&1)}, v{d}, v{d}")
            continue
        if dot==2:
            if i==0:
                e(f"  v_readfirstlane_b32 s48, v{D0}")
                e("  s_lshl_b32 s48, s48, 16                ; shift K")
                e("  s_xor_b32 s49, s48, 0x80000000")
                e("  v_mov_b32 v10, s49")
            for j in range(4):
                d=D0+4*i+j
                e(f"  v_dot2_f32_bf16 v{T0+2*j}, v{d}, s50, v10")
                e(f"  v_dot2_f32_bf16 v{T0+2*j+1}, v{d}, s51, v10")
            for j in range(4):
                t=T0+2*j
                e(f"  v_pk_add_f32 v[6:7], v[6:7], v[{t}:{t+1}]")
                e(f"  v_pk_fma_f32 v[8:9], v[{t}:{t+1}], v[{t}:{t+1}], v[8:9]")
            continue
        if i==0:
            e(f"  v_readfirstlane_b32 s48, v{D0}")
            e("  s_lshl_b32 s48, s48, 16                ; shift K")
        for j in range(4):
            d=D0+4*i+j; t=10+2*(j&1)
            e(f"  v_lshlrev_b32 v{t}, 16, v{d}")
            e(f"  v_and_b32 v{t+1}, s31, v{d}")
            e(f"  v_pk_add_f32 v[{t}:{t+1}], v[{t}:{t+1}], s[48:49] op_sel_hi:[1,0] neg_lo:[0,1] neg_hi:[0,1]")
            e(f"  v_pk_add_f32 v[6:7], v[6:7], v[{t}:{t+1}]")
            e(f"  v_pk_fma_f32 v[8:9], v[{t}:{t+1}], v[{t}:{t+1}], v[8:9]")
    if dot==1:
        e("  s_lshl_b32 s27, s16, 3")
        e("  v_mov_b32 v10, s27")
        e("  v_and_b32 v11, 3, v0")
        e("  v_lshlrev_b32 v11, 3, v11")
        e("  v_add_f32 v14, v6, v7")
        e(f"  v_mul_f32 v12, {f2h(1.0/128)}, v6")
        e(f"  v_mul_f32 v13, {f2h(1.0/128)}, v7")
        e(f"  v_add_f32_dpp v15, v14, v14 {DP[0]}")
        e("  v_fma_f32 v8, -v12, v6, v8")
        e("  v_fma_f32 v9, -v13, v7, v9")
        e(f"  v_add_f32_dpp v15, v15, v15 {DP[1]}")
        e("  v_sub_f32 v12, v12, v13")
        e("  v_add_f32 v7, v8, v9")
        e(f"  v_add_f32_dpp v15, v15, v15 {DP[2]}")
        e("  v_mul_f32 v12, v12, v12")
        e(f"  v_mul_f32 v14, {f2h(1.0/256)}, v14")
        e(f"  v_add_f32_dpp v15, v15, v15 {DP[3]}")
        e(f"  v_fmac_f32 v7, {f2h(64.0)}, v12")
        e("  s_nop 0")
        e(f"  v_add_f32_dpp v15, v15, v15 {DP[4]}")
        e("  s_nop 1")
        e(f"  v_add_f32_dpp v15, v15, v15 {DP[5]}")
        e(f"  v_mul_f32 v6, {f2h(1.0/NPW)}, v15")
        e("  s_nop 0")
        e("  v_readlane_b32 s36, v6, 63")
        e("  s_nop 1")
        e("  v_subrev_f32 v14, s36, v14")
        e("  v_mul_f32 v14, v14, v14")
        e(f"  v_fmac_f32 v7, {f2h(256.0)}, v14")
        for dpp in DP:
            e("  s_nop 1")
            e(f"  v_add_f32_dpp v7, v7, v7 {dpp}")
    else:
        e("  v_add_f32 v6, v6, v7                    ; S")
        e("  v_add_f32 v7, v8, v9                    ; Q")
        e("  s_lshl_b32 s27, s16, 3")
        for k,dpp in enumerate(DP):
            e(f"  v_add_f32_dpp v6, v6, v6 {dpp}")
            e(f"  v_add_f32_dpp v7, v7, v7 {dpp}")
            e(["  v_mov_b32 v10, s27", "  v_and_b32 v11, 3, v0", "  v_lshlrev_b32 v11, 3, v11"][k] if k<3 else "  s_nop 0")
        e(f"  v_mul_f32 v8, {f2h(1.0/NPW)}, v6        ; S/n")
        e("  v_fma_f32 v7, -v8, v6, v7               ; M2")
        e("  v_add_f32 v6, s48, v8")
    e("  s_mov_b32 exec_lo, 0")
    e("  s_brev_b32 exec_hi, 1")
    e("  ds_write_b64 v10, v[6:7]")
    e("  s_cmp_lg_u32 s33, 0")
    e("  s_cbranch_scc1 L_split")
    e("  s_mov_b64 exec, -1")
    e("  s_waitcnt lgkmcnt(0)")
    e("  s_barrier")
    e("  ds_read_b64 v[6:7], v11")
    gb("s24")
    e("  s_waitcnt lgkmcnt(0)")
    e(f"  v_add_f32_dpp v8, v6, v6 {DP[0]}")
    e("  s_nop 1")
    e(f"  v_add_f32_dpp v8, v8, v8 {DP[1]}")
    e("  v_mul_f32 v8, 0x3e800000, v8            ; mean")
    e("  v_sub_f32 v6, v6, v8")
    e(f"  v_mul_f32 v10, {f2h(float(NPW))}, v6")
    e("  v_fmac_f32 v7, v10, v6")
    e("  s_nop 1")
    e(f"  v_add_f32_dpp v7, v7, v7 {DP[0]}")
    e("  s_nop 1")
    e(f"  v_add_f32_dpp v7, v7, v7 {DP[1]}")
    params()
    if khi:
        e(f"  s_cmp_lt_u32 s20, {max(nstat,nblind)}")
        e("  s_cbranch_scc0 L_norm")
        e("  s_setprio 3")
    e("L_norm:")
    if tgate and tall:
        e(f"  s_cmp_lt_u32 s20, {nstat}")
        e("  s_cbranch_scc1 L_tax")
        e("L_ta:")
        e("  s_memrealtime s[86:87]"); e("  s_waitcnt lgkmcnt(0)"); e("  s_sub_u32 s86, s86, s84"); e(f"  s_cmp_lt_u32 s86, {tgate}"); e("  s_cbranch_scc1 L_ta")
        e("L_tax:")
    stamp(4)
    def store(i):
        v,off=addr(i)
        if dry: e(f"  s_cbranch_execz L_ns{i}")
        e(f"  global_store_dwordx4 {v}, v[{D0+4*i}:{D0+4*i+3}], s[10:11] offset:{off} sc1")
        if dry: e(f"L_ns{i}:")
        if khi and i==khi-1:
            e("  s_setprio 0")
            if tgate:
                e(f"  s_cmp_lt_u32 s20, {nstat}")
                e("  s_cbranch_scc0 L_tgx")
                e("L_tg:")
                e("  s_memrealtime s[86:87]"); e("  s_waitcnt lgkmcnt(0)"); e("  s_sub_u32 s86, s86, s84"); e(f"  s_cmp_lt_u32 s86, {tgate}"); e("  s_cbranch_scc1 L_tg")
                e("L_tgx:")
    FMA="v[8:9], v[8:9] op_sel:[0,0,1] op_sel_hi:[1,0,1]"
    if norm=="5":
        for i in range(L):
            for j in range(4):
                d=D0+4*i+j; t=12+2*(j&1)
                e(f"  v_lshlrev_b32 v{t}, 16, v{d}")
                e(f"  v_and_b32 v{t+1}, s31, v{d}")
                e(f"  v_pk_add_f32 v[{t}:{t+1}], v[{t}:{t+1}], v[10:11] op_sel_hi:[1,0] neg_lo:[0,1] neg_hi:[0,1]")
                e(f"  v_pk_fma_f32 v[{t}:{t+1}], v[{t}:{t+1}], {FMA}")
                e(f"  v_cvt_pk_bf16_f32 v{d}, v{t}, v{t+1}")
            store(i)
    elif norm=="4":
        e("  s_movk_i32 s36, 0x3f80")
        e("  s_mov_b32 s37, 1.0")
        e("  v_xor_b32 v10, 0x80000000, v10")
        for i in range(L):
            for j in range(4):
                d=D0+4*i+j
                e(f"  v_dot2_f32_bf16 v{T0+2*j}, v{d}, s36, v10")
                e(f"  v_dot2_f32_bf16 v{T0+2*j+1}, v{d}, s37, v10")
            for j in range(4):
                t=T0+2*j; e(f"  v_pk_fma_f32 v[{t}:{t+1}], v[{t}:{t+1}], {FMA}")
            for j in range(4):
                t=T0+2*j; e(f"  v_cvt_pk_bf16_f32 v{D0+4*i+j}, v{t}, v{t+1}")
            store(i)
    else:
        for r in range(2,8): e(f"  v_mov_b32 v{r}, 0")
        for r in range(12,16): e(f"  v_xor_b32 v{r}, 0x80000000, v10")
        e("  s_mov_b32 exec_lo, 0x00100001")
        e("  s_mov_b32 exec_hi, 0x10000100")
        e("  v_mov_b32 v4, 0x3f80")
        e("  s_lshl_b64 exec, exec, 1")
        e("  v_mov_b32 v4, 1.0")
        e("  s_lshl_b64 exec, exec, 1")
        e("  v_mov_b32 v5, 0x3f80")
        e("  s_lshl_b64 exec, exec, 1")
        e("  v_mov_b32 v5, 1.0")
        e("  s_mov_b64 exec, -1")
        e("  s_nop 1")
        def M(i):
            t=T0+8*(i&1); d=D0+4*i
            e(f"  v_mfma_f32_16x16x32_bf16 v[{t}:{t+3}], v[4:7], v[{d}:{d+3}], v[12:15]")
            e(f"  v_mfma_f32_16x16x32_bf16 v[{t+4}:{t+7}], v[2:5], v[{d}:{d+3}], v[12:15]")
        M(0)
        for i in range(L):
            if i+1<L: M(i+1)
            if i==0: e("  s_nop 5")
            t0=T0+8*(i&1)
            for j in range(4):
                t=t0+2*j; e(f"  v_pk_fma_f32 v[{t}:{t+1}], v[{t}:{t+1}], {FMA}")
            for j in range(4):
                t=t0+2*j; e(f"  v_cvt_pk_bf16_f32 v{D0+4*i+j}, v{t}, v{t+1}")
            store(i)
    if dry: e("  s_cbranch_execz L_dryend")
    e("  s_cmp_eq_u32 s33, 2")
    e("  s_cbranch_scc0 L_done")
    e("  s_waitcnt vmcnt(0)")
    e("L_switch:")
    e("  s_add_u32 s33, s33, 1")
    e("  s_xor_b32 s26, s26, 1")
    e("  s_branch L_saddr")
    e("@@OTHER0@@")
    e("L_other:")
    e("  s_waitcnt lgkmcnt(0)")
    if nblind:
        e(f"  s_cmp_lt_u32 s20, {nblind}")
        e("  s_cbranch_scc1 L_go")
    if dry:
        e("  s_cmp_lg_u32 s16, 1")
        e("  s_cbranch_scc1 L_dwait")
        e("  s_mov_b64 exec, 0")
        e("  s_setprio 0")
        e("  s_branch L_norm")
        e("L_dryend:")
        e("  s_mov_b64 exec, -1")
        e("  s_setprio 3")
    e("  s_branch L_dwait")
    e("@@OTHER1@@")
    e("  s_and_b32 s18, s20, 7")
    e("  s_lshl_b32 s19, s19, 3")
    e("  s_or_b32 s18, s18, s19")
    e("  s_lshl_b32 s18, s18, 2")
    e(f"  s_add_u32 s18, s18, {voff}")
    e("  s_mov_b32 s34, 0")
    e("  s_waitcnt lgkmcnt(0)")
    if prof: e("  s_memrealtime s[76:77]")
    e("  s_memtime s[50:51]")
    e("  s_lshr_b32 s19, s42, 13")
    e("  s_xor_b32 s19, s19, s24")
    e(f"  s_add_u32 s56, s28, {TAGC:#x}")
    e("  s_andn2_b32 s56, s56, 0xff             ; tag")
    e("  s_waitcnt lgkmcnt(0)")
    e("  s_load_dword s44, s[40:41], s42 glc")
    e("  s_waitcnt lgkmcnt(0)")
    e("  s_memtime s[52:53]")
    e("  s_waitcnt lgkmcnt(0)")
    e("  s_load_dword s44, s[40:41], s43 glc")
    e("  s_waitcnt lgkmcnt(0)")
    e("  s_memtime s[54:55]")
    e("  s_lshl_b32 s44, s52, 1")
    e("  s_sub_u32 s44, s44, s50")
    e("  s_waitcnt lgkmcnt(0)")
    if prof: e("  s_memrealtime s[78:79]")
    e("  s_sub_u32 s44, s44, s54")
    e("  s_sub_u32 s46, 0, s44")
    e("  s_cmp_lg_u32 s19, 0")
    e("  s_cselect_b32 s44, s46, s44")
    e("  s_ashr_i32 s44, s44, 3")
    e("  s_min_i32 s44, s44, 127")
    e("  s_max_i32 s44, s44, -127")
    e("  s_add_u32 s44, s44, 128")
    e("  s_or_b32 s44, s44, s56")
    if force != 1: e("  s_atomic_swap s44, s[12:13], s18")
    if nblind:
        e(f"  s_cmp_lt_u32 s20, {nblind}")
        e("  s_cbranch_scc1 L_go")
    e("  s_mov_b32 s57, s56")
    e(f"  s_mov_b32 s58, {TAGC:#x}")
    e("  s_waitcnt lgkmcnt(0)")
    if prof: e("  s_memrealtime s[80:81]")
    e("L_dpoll:")
    e(f"  s_load_dwordx16 s[{V}:{V+15}], s[12:13], {voff} glc")
    e("  s_add_u32 s34, s34, 1")
    e("  s_waitcnt lgkmcnt(0)")
    for k in range(0,16,2):
        e(f"  s_xor_b64 s[{V+k}:{V+k+1}], s[{V+k}:{V+k+1}], s[56:57]")
    e(f"  s_or_b64 s[54:55], s[{V}:{V+1}], s[{V+2}:{V+3}]")
    for k in range(4,16,2):
        e(f"  s_or_b64 s[54:55], s[54:55], s[{V+k}:{V+k+1}]")
    e("  s_or_b32 s54, s54, s55")
    e("  s_lshr_b32 s54, s54, 8")
    e("  s_cbranch_scc0 L_votes")
    e(f"  s_cmp_lt_u32 s34, {limit}")
    e("  s_cbranch_scc1 L_dpoll")
    e("  s_atomic_add s58, s[12:13], 0")
    e("  s_mov_b32 s44, 6")
    e("  s_branch L_dgot")
    e("L_votes:")
    e(f"  s_cmp_lg_u32 s18, {voff+28 if nblind else voff}")
    e("  s_cbranch_scc1 L_nobump")
    e("  s_atomic_add s58, s[12:13], 0")
    e("L_nobump:")
    if prof: e("  s_mov_b32 s82, s34")
    for half in (0,1):
        base=V+half*8
        for k in range(1,8): e(f"  s_add_u32 s{base}, s{base}, s{base+k}")
        e(f"  s_addk_i32 s{base}, -1024")
    if prof: e(f"  s_mov_b32 s{PR+14}, s{V}"); e(f"  s_mov_b32 s{PR+15}, s{V+8}")
    e(f"  s_abs_i32 s54, s{V}")
    e(f"  s_abs_i32 s55, s{V+8}")
    e("  s_min_u32 s54, s54, s55")
    e(f"  s_lshr_b32 s{V}, s{V}, 31")
    e(f"  s_lshr_b32 s{V+8}, s{V+8}, 31")
    e("  s_xor_b32 s46, s24, 1")
    e(f"  s_xor_b32 s{V}, s{V}, s46")
    e(f"  s_xor_b32 s{V+8}, s{V+8}, s46")
    e("  s_sub_u32 s46, s10, s4")
    e("  s_lshr_b32 s46, s46, 12")
    e(f"  s_xor_b32 s47, s{V}, s{V+8}")
    e("  s_lshl_b32 s47, s47, 1")
    e("  s_xor_b32 s46, s46, s47")
    e("  s_and_b32 s46, s46, 3")
    e("  s_cmp_eq_u32 s46, 2")
    e("  s_cselect_b32 s54, 0, s54")
    e(f"  s_lshl_b32 s{V}, s{V}, 3")
    e(f"  s_or_b32 s44, s{V}, s{V+8}")
    e("  s_or_b32 s44, s44, 2")
    e(f"  s_cmp_gt_u32 s54, {thr}")
    e("  s_cselect_b32 s44, s44, 0")
    e("L_dgot:")
    e("  s_or_b32 s44, s44, s56")
    e("  v_mov_b32 v6, 0")
    e("  v_mov_b32 v7, 0")
    e("  v_mov_b32 v8, s44")
    e("  ds_write_b96 v6, v[6:8] offset:64")
    e("  ds_write2_b32 v6, v6, v7 offset0:35 offset1:39")
    e("  s_waitcnt lgkmcnt(0)")
    e("L_dwait:")
    e("  v_mov_b32 v10, 0")
    e("  s_barrier")
    e("  ds_read_b32 v6, v10 offset:72")
    e("  s_waitcnt lgkmcnt(0)")
    e("  v_readfirstlane_b32 s44, v6")
    e("  s_bitcmp1_b32 s44, 1")
    e("  s_cbranch_scc0 L_go")
    e("  s_mov_b32 s33, 1")
    if hyb=="k":
        e("  s_lshr_b32 s25, s16, 1"); e("  s_xor_b32 s25, s25, s20"); e("  s_bitcmp1_b32 s25, 0")
    elif hyb=="j": e("  s_bitcmp1_b32 s20, 0")
    elif hyb=="o": e("  s_cmp_eq_u32 s16, 9")
    elif hyb=="x": e("  s_cmp_lg_u32 s16, 9")
    e("  s_cselect_b32 s25, 3, 0")
    e("  s_cselect_b32 s49, s4, s10")
    e("  s_lshr_b32 s25, s44, s25")
    e("  s_and_b32 s25, s25, 1                  ; parity")
    e("  s_and_b32 s21, s49, 0x3000")
    e("  s_mov_b32 s26, s25")
    if wpair==2:
        e("  s_or_b32 s27, s16, s24")
        e("  s_cbranch_scc1 L_saddr")
        e("  s_lshl_b32 s45, s22, 6")
        e("  s_add_u32 s45, s45, 0x20000")
        e("  s_load_dword s45, s[14:15], s45 glc")
    e("L_saddr:")
    e("  s_lshr_b32 s27, s16, 1")
    e("  s_lshl_b32 s27, s27, 17")
    e("  s_add_u32 s27, s27, s23")
    e("  v_and_b32 v1, 63, v0")
    e("  v_lshl_add_u32 v1, v1, 4, s27")
    e("  s_lshl_b32 s35, s16, 16")
    e("  s_lshl_b32 s27, s26, 13")
    e("  s_add_u32 s35, s35, s27")
    e("  s_sub_u32 s35, s35, s21")
    e("  s_mov_b32 s36, 0x1ffff")
    for k in range(8):
        e("  s_and_b32 s27, s35, s36")
        e(f"  v_add_u32 v{A0+k}, s27, v1")
        if k<7: e(f"  s_addk_i32 s35, {0x1000 if k%2==0 else 0x3000:#x}")
    e("L_go:")
    stamp(1)
    for i in range(4): load(i)
    e("  s_branch L_go4")
    e("@@END@@")
    e("L_split:")
    e("  s_lshr_b32 s17, s16, 1")
    e("  s_lshl_b32 s18, s17, 2")
    e("  s_lshl_b32 s19, s17, 4")
    e("  v_mov_b32 v11, s18")
    e("  v_mov_b32 v12, 1")
    e("  v_mov_b32 v15, s19")
    e("  ds_add_rtn_u32 v12, v11, v12 offset:64")
    e("  v_xor_b32 v10, 8, v10")
    e("  s_waitcnt lgkmcnt(0)")
    e("  v_readlane_b32 s36, v12, 63")
    e("  s_bitcmp1_b32 s36, 0")
    e("  s_cbranch_scc0 L_pwait")
    e("  ds_read_b64 v[12:13], v10")
    e("  v_mov_b32 v8, v6")
    gb("s17")
    e("  s_lshl_b32 s36, s22, 6")
    e("  s_add_u32 s36, s36, 0x20000")
    e("  s_add_u32 s38, s14, s36")
    e("  s_addc_u32 s39, s15, 0")
    e("  s_lshl_b32 s56, s25, 5")
    e("  s_add_u32 s56, s56, s19")
    e("  s_add_u32 s57, s56, 8")
    e("  s_xor_b32 s46, s56, 32")
    e("  s_andn2_b32 s45, s44, 0xff             ; tag")
    e("  s_mov_b32 s53, s45")
    e("  s_mov_b32 s55, s45")
    e("  s_waitcnt lgkmcnt(0)")
    merge(NPW)
    e("  s_cmp_eq_u32 s33, 1")
    e("  s_cbranch_scc0 L_alone")
    e("  v_readlane_b32 s52, v8, 63")
    e("  v_readlane_b32 s54, v7, 63")
    e("  s_bitcmp1_b32 s44, 2")
    e("  s_cbranch_scc1 L_timeout")
    e("  s_mov_b32 s34, 0")
    e("  s_nop 1")
    if force != 2:
        e("  s_atomic_swap_x2 s[52:53], s[38:39], s56")
        e("  s_atomic_swap_x2 s[54:55], s[38:39], s57")
    e("L_poll:")
    e("  s_load_dwordx4 s[40:43], s[38:39], s46 glc")
    e("  s_add_u32 s34, s34, 1")
    e("  s_waitcnt lgkmcnt(0)")
    e("  s_xor_b32 s41, s41, s45")
    e("  s_xor_b32 s43, s43, s45")
    e("  s_or_b32 s41, s41, s43")
    e("  s_cbranch_scc0 L_got")
    e(f"  s_cmp_lt_u32 s34, {limit}")
    e("  s_cbranch_scc1 L_poll")
    e("L_timeout:")
    e("  v_mov_b32 v9, v7")
    e("  ds_write_b64 v15, v[8:9] offset:160")
    e("  v_mov_b32 v11, 5")
    e("  s_branch L_flag")
    e("L_alone:")
    e("  v_mov_b32 v11, 12")
    e("  s_cmp_eq_u32 s33, 3")
    e("  s_cbranch_scc1 L_flag")
    e("  ds_read_b64 v[12:13], v15 offset:160")
    e("  s_waitcnt lgkmcnt(0)")
    e("  s_branch L_comb")
    e("L_got:")
    e("  v_mov_b32 v12, s40")
    e("  v_mov_b32 v13, s42")
    e("L_comb:")
    merge(2*NPW)
    params()
    e("  s_lshl_b32 s36, s33, 2")
    e("  v_mov_b32 v11, s36")
    e("  ds_write_b96 v15, v[8:10] offset:128")
    e("L_flag:")
    e("  ds_write_b32 v15, v11 offset:140")
    e("L_pwait:")
    e("  s_mov_b64 exec, -1")
    e("  v_mov_b32 v15, s19")
    e("L_pspin:")
    e("  ds_read_b128 v[8:11], v15 offset:128")
    e("  s_waitcnt lgkmcnt(0)")
    e("  v_readfirstlane_b32 s36, v11")
    e("  s_lshr_b32 s37, s36, 2")
    e("  s_cmp_lg_u32 s37, s33")
    e("  s_cbranch_scc1 L_pspin")
    e("  s_bitcmp1_b32 s36, 0")
    e("  s_cbranch_scc1 L_switch")
    e("  s_branch L_norm")
    e("L_done:")
    if prof:
        stamp(5)
        e("  s_waitcnt vmcnt(0)")
        stamp(6)
        e("  s_getreg_b32 s36, hwreg(HW_REG_XCC_ID)")
        e("  s_getreg_b32 s37, hwreg(HW_REG_HW_ID)")
        e("  s_waitcnt lgkmcnt(0)")
        e("  s_lshl_b32 s3, s2, 2"); e("  s_add_u32 s3, s3, s16"); e("  s_lshl_b32 s3, s3, 6"); e("  s_add_u32 s3, s3, 0x100000")
        e("  v_mov_b32 v5, s3")
        for k in range(7): e(f"  v_mov_b32 v{8+k}, s{PR+2*k}")
        e("  s_lshl_b32 s22, s22, 1")
        e("  v_mov_b32 v15, s22")
        e("  s_mov_b64 exec, 1")
        e("  global_store_dwordx4 v5, v[8:11], s[14:15]")
        e("  global_store_dwordx4 v5, v[12:15], s[14:15] offset:16")
        e("  v_mov_b32 v16, s36"); e("  v_mov_b32 v17, s37"); e("  v_mov_b32 v18, s80"); e("  v_mov_b32 v19, s82")
        e(f"  v_mov_b32 v20, s{PR+14}"); e(f"  v_mov_b32 v21, s{PR+15}"); e("  v_mov_b32 v22, s76"); e("  v_mov_b32 v23, s78")
        e("  global_store_dwordx4 v5, v[16:19], s[14:15] offset:32")
        e("  global_store_dwordx4 v5, v[20:23], s[14:15] offset:48")
    e("L_end:"); e("  s_endpgm")
    nv=T0+max({"5":0,"4":8,"m":16}[norm], 8 if dot==2 else 0)
    e('.section .rodata,"a"'); e(".p2align 6"); e(f".amdhsa_kernel {name}")
    e(f"  .amdhsa_next_free_vgpr {nv}"); e(f"  .amdhsa_next_free_sgpr {88 if (prof or tgate) else 60}"); e(f"  .amdhsa_accum_offset {(nv+3)//4*4}")
    e("  .amdhsa_group_segment_fixed_size 0"); e("  .amdhsa_kernarg_size 48"); e("  .amdhsa_user_sgpr_count 2")
    e("  .amdhsa_user_sgpr_kernarg_segment_ptr 1"); e("  .amdhsa_system_sgpr_workgroup_id_x 1")
    e("  .amdhsa_float_denorm_mode_32 3"); e(".end_amdhsa_kernel")
    t="\n".join(o)+"\n"
    a=t.index("@@OTHER0@@\n"); b=t.index("@@OTHER1@@\n"); c=t.index("@@END@@\n")
    other=t[a+11:b]; meas=t[b+11:c]
    t=t[:a]+t[c+8:]
    t=t.replace("@@MEASURE@@\n", meas+other)
    return t
if __name__=="__main__":
    ap=argparse.ArgumentParser()
    I=dict(nstat=24,khi=14,thr=40,limit=4096,lds=65536,dot=1,warm=0,force=0,prof=0,dry=0,nblind=0,voff=128,wpair=0,tgate=0,tall=0); S=dict(norm="5",hyb="k")
    for k,d in I.items(): ap.add_argument("--"+k,type=int,default=d)
    for k,d in S.items(): ap.add_argument("--"+k,default=d)
    ap.add_argument("-o",default="-"); a=ap.parse_args()
    kw={k:getattr(a,k) for k in list(I)+list(S)}
    (sys.stdout if a.o=="-" else open(a.o,"w")).write(gen(**kw))
```

```python
import sys, gen10
HEADER = """\
;
;
"""
kw = dict(norm="4", warm=8, voff=64, wpair=1, hyb="j", khi=14, dot=2, thr=40, limit=4096, grp=8, alt=1, sprio=1, stf="sc1", ldf="nt")
for a in sys.argv[2:]:
    k, v = a.split("="); kw[k] = type(kw.get(k, 0))(v.replace("+"," "))
open(sys.argv[1], "w").write(gen10.gen(header=HEADER, **kw))
```

```python
import sys, argparse, struct
def f2h(x): return "0x%08x" % struct.unpack("<I", struct.pack("<f", x))[0]
name="standalone__instancenorm__prompt_kernel"
TAGC = 0x6B43A900
PSTR = 4352
DP=["quad_perm:[1,0,3,2] row_mask:0xf bank_mask:0xf", "quad_perm:[2,3,0,1] row_mask:0xf bank_mask:0xf",
    "row_half_mirror row_mask:0xf bank_mask:0xf", "row_mirror row_mask:0xf bank_mask:0xf",
    "row_bcast:15 row_mask:0xa bank_mask:0xf", "row_bcast:31 row_mask:0xc bank_mask:0xf"]

def gen(nstat=24, khi=14, thr=40, limit=4096, lds=65536, dot=1, norm="5", warm=0, force=0, prof=0, hyb="k", dry=0, nblind=0, voff=128, wpair=0, tgate=0, tall=0, nowait=0, clip=127, grp=16, alt=0, lprio=0, sprio=0, header=""):
    o=[]; e=o.append
    GP=grp//2; LG={8:3,4:2,2:1,1:0}[GP]
    L=32; A0=16; D0=24; NPW=16384; nwg=448; V=36; PR=60; T0=D0+4*L
    def stamp(k):
        if prof: e(f"  s_memrealtime s[{PR+2*k}:{PR+2*k+1}]")
    def params():
        e("  v_cvt_pk_bf16_f32 v10, v8, v8")
        e("  v_and_b32 v10, s31, v10")
        e("  v_sub_f32 v8, v8, v10")
        e("  v_mul_f32 v8, v8, v8")
        e(f"  v_fmac_f32 v8, {f2h(1.0/65536)}, v7")
        e("  v_max_f32 v8, 0, v8")
        e("  v_cvt_pk_bf16_f32 v8, v8, v8")
        e("  v_and_b32 v8, s31, v8")
        e(f"  v_add_f32 v8, {f2h(1e-5)}, v8            ; + eps")
        e("  v_cvt_pk_bf16_f32 v8, v8, v8")
        e("  v_and_b32 v8, s31, v8")
        e("  v_sqrt_f32 v8, v8")
        e("  v_mov_b32 v9, s27                       ; b")
        e("  v_cvt_pk_bf16_f32 v8, v8, v8")
        e("  v_and_b32 v8, s31, v8")
        e("  v_rcp_f32 v8, v8")
        e("  s_nop 0")
        e("  v_mul_f32 v8, s35, v8")
    def gb(sel):
        e(f"  s_lshl_b32 s27, {sel}, 4")
        e("  s_xor_b32 s27, s27, 16")
        e("  s_lshl_b32 s35, s29, s27")
        e("  s_lshl_b32 s27, s30, s27")
        e("  s_and_b32 s35, s35, s31                 ; g")
        e("  s_and_b32 s27, s27, s31                 ; b")
    def merge(n):
        e("  v_sub_f32 v14, v12, v8")
        e("  v_add_f32 v8, v12, v8")
        e("  v_add_f32 v7, v13, v7")
        e("  v_mul_f32 v8, 0.5, v8")
        e("  v_mul_f32 v14, v14, v14")
        e(f"  v_fmac_f32 v7, {f2h(n/2.0)}, v14")
    if header: e(header.rstrip("\n"))
    e(f"; @launch grid=({nwg},1,1) block=(256,1,1) lds={max(lds,256)}")
    e('.amdgcn_target "amdgcn-amd-amdhsa--gfx950"')
    e(".text"); e(f".globl {name}"); e(".p2align 8"); e(f".type {name},@function"); e(f"{name}:")
    stamp(0)
    if tgate: e("  s_memrealtime s[84:85]")
    def addr(i): return f"v{A0+i//4}", (i%4)*1024
    def load(i):
        v,off=addr(i)
        e(f"  global_load_dwordx4 v[{D0+4*i}:{D0+4*i+3}], {v}, s[4:5] offset:{off} nt")
    def common(ws=1):
        if ws: e("  s_load_dwordx2 s[14:15], s[0:1], 40    ; ws")
        e("  v_readfirstlane_b32 s16, v2            ; wave")
        e("  s_movk_i32 s26, 0x1000")
        for k in range(1,8): e(f"  v_add_u32 v{A0+k}, s26, v{A0+k-1}")
        e("  s_mov_b32 s33, 0")
        if prof:
            e(f"  s_mov_b32 s{PR+14}, 0x7fffffff"); e(f"  s_mov_b32 s{PR+15}, 0x7fffffff"); e("  s_mov_b32 s34, 0")
            for r in (76,78,80,82): e(f"  s_mov_b32 s{r}, 0")
    e("  s_load_dwordx8 s[4:11], s[0:1], 0      ; x, g, b, out")
    e("  s_setprio 3")
    e("  s_and_b32 s17, s2, 3")
    e("  s_lshr_b32 s20, s2, 3                  ; j")
    e("  s_mul_i32 s22, s17, 56")
    e("  s_bfe_u32 s24, s2, 0x10002")
    e("  s_add_u32 s22, s22, s20                ; pair")
    e("  v_and_b32 v1, 63, v0")
    e("  v_lshrrev_b32 v2, 6, v0")
    e("  s_lshl1_add_u32 s27, s22, s24          ; channel")
    e("  v_lshlrev_b32 v1, 4, v1")
    e("  s_lshl_b32 s27, s27, 17")
    e(f"  v_lshl_add_u32 v{A0}, v2, 15, v1")
    e(f"  s_cmp_ge_u32 s20, {nstat}")
    e(f"  v_add_u32 v{A0}, s27, v{A0}")
    e("  s_cbranch_scc1 L_late")
    e("  s_waitcnt lgkmcnt(0)")
    stamp(1)
    for i in range(4): load(i)
    common(prof)
    e("L_go4:")
    for i in range(4,L): load(i)
    e("  s_branch L_stats")
    e("L_late:")
    e("  s_cmp_ge_u32 s20, 56")
    e("  s_cbranch_scc1 L_end")
    if warm:
        e(f"  s_cmp_ge_u32 s20, {nstat+warm}")
        e("  s_cbranch_scc1 L_nowarm")
        e("  s_getpc_b64 s[12:13]")
        e("L_pc:")
        e(f"  v_lshlrev_b32 v6, {5 if dot==1 else 6}, v0")
        e("  v_min_u32 v6, L_end-L_pc, v6")
        e("  v_mov_b32 v9, s13")
        e("  v_add_co_u32 v8, vcc, s12, v6")
        e("  s_nop 1")
        e("  v_addc_co_u32 v9, vcc, 0, v9, vcc")
        e("  global_load_dword v3, v[8:9], off")
        e("L_nowarm:")
    common()
    e("  s_lshl_b32 s23, s22, 18")
    e("  s_cmp_lg_u32 s16, 0")
    e("  s_cbranch_scc1 L_other")
    if alt:
        e("  s_lshr_b32 s21, s22, 3")
        e("  s_and_b32 s59, s22, 1")
        e("  s_lshl1_add_u32 s21, s21, s59")
    else:
        e(f"  s_lshr_b32 s21, s22, {LG}")
    e(f"  s_mul_i32 s12, s21, {PSTR if grp==16 else 1280}")
    e("  s_mul_i32 s42, s2, 0x0b00")
    e("  s_and_b32 s43, s42, 0x1f00")
    e("  s_and_b32 s42, s42, 0xe000")
    e("  s_lshl1_add_u32 s42, s42, s43")
    e("  s_add_u32 s46, s42, s23")
    e(f"  s_lshl_b32 s42, s20, {11 if alt else 12}")
    e("  s_and_b32 s42, s42, 0x2000")
    e("  s_xor_b32 s43, s42, 0x2000")
    if alt:
        e("  s_lshr_b32 s18, s20, 1")
        e("  s_xor_b32 s19, s24, s18")
    else:
        e("  s_xor_b32 s19, s24, s20")
    e("  s_and_b32 s19, s19, 1")
    e("  s_waitcnt lgkmcnt(0)")
    if grp<16:
        e("  s_sub_u32 s59, s10, s4")
        e("  s_bitcmp1_b32 s59, 12")
        e("  s_cselect_b32 s47, s21, s19")
        e("  s_bitcmp1_b32 s47, 0")
    e("  s_cselect_b64 s[40:41], s[10:11], s[4:5]")
    e("  s_add_u32 s12, s14, s12")
    e("  s_addc_u32 s13, s15, 0")
    e("  s_and_b32 s47, s40, 0x3000")
    e("  s_sub_u32 s47, 0x4000, s47")
    e("  s_add_u32 s46, s46, s47")
    e("  s_add_u32 s40, s40, s46")
    e("  s_addc_u32 s41, s41, 0")
    e("  s_load_dword s28, s[12:13], 0 glc      ; epoch")
    e("  s_load_dword s44, s[40:41], s42 glc")
    e("  s_load_dword s44, s[40:41], s43 glc")
    if wpair==1:
        e("  s_lshl_b32 s45, s22, 6")
        e("  s_add_u32 s45, s45, 0x80000")
        e("  s_load_dword s44, s[14:15], s45 glc")
    e("@@MEASURE@@")
    e("L_stats:")
    e(f"  s_setprio {sprio}")
    e("  s_lshl_b32 s27, s22, 2")
    e("  s_load_dword s29, s[6:7], s27")
    e("  s_load_dword s30, s[8:9], s27")
    e("  s_mov_b32 s31, 0xffff0000")
    if dot==1: e("  s_mov_b32 s48, 0x3f803f80              ; (1.0, 1.0)")
    if dot==2:
        e("  s_movk_i32 s50, 0x3f80                 ; (1.0, 0)")
        e("  s_mov_b32 s51, 1.0                     ; (0, 1.0)")
    for r in range(6,10): e(f"  v_mov_b32 v{r}, 0")
    for i in range(L):
        e(f"  s_waitcnt vmcnt({L-1-i})")
        if i==0: stamp(2)
        if i==L-1: stamp(3)
        if dot==1:
            for j in range(4):
                d=D0+4*i+j
                e(f"  v_dot2c_f32_bf16 v{6+(j&1)}, s48, v{d}")
                e(f"  v_dot2c_f32_bf16 v{8+(j&1)}, v{d}, v{d}")
            continue
        if dot==2:
            if i==0:
                e(f"  v_readfirstlane_b32 s48, v{D0}")
                e("  s_lshl_b32 s48, s48, 16                ; shift K")
                e("  s_xor_b32 s49, s48, 0x80000000")
                e("  v_mov_b32 v10, s49")
            for j in range(4):
                d=D0+4*i+j
                e(f"  v_dot2_f32_bf16 v{T0+2*j}, v{d}, s50, v10")
                e(f"  v_dot2_f32_bf16 v{T0+2*j+1}, v{d}, s51, v10")
            for j in range(4):
                t=T0+2*j
                e(f"  v_pk_add_f32 v[6:7], v[6:7], v[{t}:{t+1}]")
                e(f"  v_pk_fma_f32 v[8:9], v[{t}:{t+1}], v[{t}:{t+1}], v[8:9]")
            continue
        if i==0:
            e(f"  v_readfirstlane_b32 s48, v{D0}")
            e("  s_lshl_b32 s48, s48, 16                ; shift K")
        for j in range(4):
            d=D0+4*i+j; t=10+2*(j&1)
            e(f"  v_lshlrev_b32 v{t}, 16, v{d}")
            e(f"  v_and_b32 v{t+1}, s31, v{d}")
            e(f"  v_pk_add_f32 v[{t}:{t+1}], v[{t}:{t+1}], s[48:49] op_sel_hi:[1,0] neg_lo:[0,1] neg_hi:[0,1]")
            e(f"  v_pk_add_f32 v[6:7], v[6:7], v[{t}:{t+1}]")
            e(f"  v_pk_fma_f32 v[8:9], v[{t}:{t+1}], v[{t}:{t+1}], v[8:9]")
    if dot==1:
        e("  s_lshl_b32 s27, s16, 3")
        e("  v_mov_b32 v10, s27")
        e("  v_and_b32 v11, 3, v0")
        e("  v_lshlrev_b32 v11, 3, v11")
        e("  v_add_f32 v14, v6, v7")
        e(f"  v_mul_f32 v12, {f2h(1.0/128)}, v6")
        e(f"  v_mul_f32 v13, {f2h(1.0/128)}, v7")
        e(f"  v_add_f32_dpp v15, v14, v14 {DP[0]}")
        e("  v_fma_f32 v8, -v12, v6, v8")
        e("  v_fma_f32 v9, -v13, v7, v9")
        e(f"  v_add_f32_dpp v15, v15, v15 {DP[1]}")
        e("  v_sub_f32 v12, v12, v13")
        e("  v_add_f32 v7, v8, v9")
        e(f"  v_add_f32_dpp v15, v15, v15 {DP[2]}")
        e("  v_mul_f32 v12, v12, v12")
        e(f"  v_mul_f32 v14, {f2h(1.0/256)}, v14")
        e(f"  v_add_f32_dpp v15, v15, v15 {DP[3]}")
        e(f"  v_fmac_f32 v7, {f2h(64.0)}, v12")
        e("  s_nop 0")
        e(f"  v_add_f32_dpp v15, v15, v15 {DP[4]}")
        e("  s_nop 1")
        e(f"  v_add_f32_dpp v15, v15, v15 {DP[5]}")
        e(f"  v_mul_f32 v6, {f2h(1.0/NPW)}, v15")
        e("  s_nop 0")
        e("  v_readlane_b32 s36, v6, 63")
        e("  s_nop 1")
        e("  v_subrev_f32 v14, s36, v14")
        e("  v_mul_f32 v14, v14, v14")
        e(f"  v_fmac_f32 v7, {f2h(256.0)}, v14")
        for dpp in DP:
            e("  s_nop 1")
            e(f"  v_add_f32_dpp v7, v7, v7 {dpp}")
    else:
        e("  v_add_f32 v6, v6, v7                    ; S")
        e("  v_add_f32 v7, v8, v9                    ; Q")
        e("  s_lshl_b32 s27, s16, 3")
        for k,dpp in enumerate(DP):
            e(f"  v_add_f32_dpp v6, v6, v6 {dpp}")
            e(f"  v_add_f32_dpp v7, v7, v7 {dpp}")
            e(["  v_mov_b32 v10, s27", "  v_and_b32 v11, 3, v0", "  v_lshlrev_b32 v11, 3, v11"][k] if k<3 else "  s_nop 0")
        e(f"  v_mul_f32 v8, {f2h(1.0/NPW)}, v6        ; S/n")
        e("  v_fma_f32 v7, -v8, v6, v7               ; M2")
        e("  v_add_f32 v6, s48, v8")
    e("  s_mov_b32 exec_lo, 0")
    e("  s_brev_b32 exec_hi, 1")
    e("  ds_write_b64 v10, v[6:7]")
    e("  s_cmp_lg_u32 s33, 0")
    e("  s_cbranch_scc1 L_split")
    e("  s_mov_b64 exec, -1")
    e("  s_waitcnt lgkmcnt(0)")
    e("  s_barrier")
    e("  ds_read_b64 v[6:7], v11")
    gb("s24")
    e("  s_waitcnt lgkmcnt(0)")
    e(f"  v_add_f32_dpp v8, v6, v6 {DP[0]}")
    e("  s_nop 1")
    e(f"  v_add_f32_dpp v8, v8, v8 {DP[1]}")
    e("  v_mul_f32 v8, 0x3e800000, v8            ; mean")
    e("  v_sub_f32 v6, v6, v8")
    e(f"  v_mul_f32 v10, {f2h(float(NPW))}, v6")
    e("  v_fmac_f32 v7, v10, v6")
    e("  s_nop 1")
    e(f"  v_add_f32_dpp v7, v7, v7 {DP[0]}")
    e("  s_nop 1")
    e(f"  v_add_f32_dpp v7, v7, v7 {DP[1]}")
    params()
    if khi:
        e(f"  s_cmp_lt_u32 s20, {max(nstat,nblind)}")
        e("  s_cbranch_scc0 L_norm")
        e("  s_setprio 3")
    e("L_norm:")
    if lprio==3 or (sprio and not lprio):
        e(f"  s_cmp_lt_u32 s20, {nstat}"); e("  s_cbranch_scc1 L_lp"); e("  s_setprio 0"); e("L_lp:")
    if tgate and tall:
        e(f"  s_cmp_lt_u32 s20, {nstat}")
        e("  s_cbranch_scc1 L_tax")
        e("L_ta:")
        e("  s_memrealtime s[86:87]"); e("  s_waitcnt lgkmcnt(0)"); e("  s_sub_u32 s86, s86, s84"); e(f"  s_cmp_lt_u32 s86, {tgate}"); e("  s_cbranch_scc1 L_ta")
        e("L_tax:")
    stamp(4)
    def store(i):
        v,off=addr(i)
        if dry: e(f"  s_cbranch_execz L_ns{i}")
        e(f"  global_store_dwordx4 {v}, v[{D0+4*i}:{D0+4*i+3}], s[10:11] offset:{off} sc1")
        if dry: e(f"L_ns{i}:")
        if khi and i==khi-1:
            if lprio==1:
                e(f"  s_cmp_lt_u32 s20, {nstat}"); e("  s_cbranch_scc0 L_kp"); e("  s_setprio 0"); e("L_kp:")
            else: e("  s_setprio 0")
            if tgate:
                e(f"  s_cmp_lt_u32 s20, {nstat}")
                e("  s_cbranch_scc0 L_tgx")
                e("L_tg:")
                e("  s_memrealtime s[86:87]"); e("  s_waitcnt lgkmcnt(0)"); e("  s_sub_u32 s86, s86, s84"); e(f"  s_cmp_lt_u32 s86, {tgate}"); e("  s_cbranch_scc1 L_tg")
                e("L_tgx:")
    FMA="v[8:9], v[8:9] op_sel:[0,0,1] op_sel_hi:[1,0,1]"
    if norm=="5":
        for i in range(L):
            for j in range(4):
                d=D0+4*i+j; t=12+2*(j&1)
                e(f"  v_lshlrev_b32 v{t}, 16, v{d}")
                e(f"  v_and_b32 v{t+1}, s31, v{d}")
                e(f"  v_pk_add_f32 v[{t}:{t+1}], v[{t}:{t+1}], v[10:11] op_sel_hi:[1,0] neg_lo:[0,1] neg_hi:[0,1]")
                e(f"  v_pk_fma_f32 v[{t}:{t+1}], v[{t}:{t+1}], {FMA}")
                e(f"  v_cvt_pk_bf16_f32 v{d}, v{t}, v{t+1}")
            store(i)
    elif norm=="4":
        e("  s_movk_i32 s36, 0x3f80")
        e("  s_mov_b32 s37, 1.0")
        e("  v_xor_b32 v10, 0x80000000, v10")
        for i in range(L):
            for j in range(4):
                d=D0+4*i+j
                e(f"  v_dot2_f32_bf16 v{T0+2*j}, v{d}, s36, v10")
                e(f"  v_dot2_f32_bf16 v{T0+2*j+1}, v{d}, s37, v10")
            for j in range(4):
                t=T0+2*j; e(f"  v_pk_fma_f32 v[{t}:{t+1}], v[{t}:{t+1}], {FMA}")
            for j in range(4):
                t=T0+2*j; e(f"  v_cvt_pk_bf16_f32 v{D0+4*i+j}, v{t}, v{t+1}")
            store(i)
    else:
        for r in range(2,8): e(f"  v_mov_b32 v{r}, 0")
        for r in range(12,16): e(f"  v_xor_b32 v{r}, 0x80000000, v10")
        e("  s_mov_b32 exec_lo, 0x00100001")
        e("  s_mov_b32 exec_hi, 0x10000100")
        e("  v_mov_b32 v4, 0x3f80")
        e("  s_lshl_b64 exec, exec, 1")
        e("  v_mov_b32 v4, 1.0")
        e("  s_lshl_b64 exec, exec, 1")
        e("  v_mov_b32 v5, 0x3f80")
        e("  s_lshl_b64 exec, exec, 1")
        e("  v_mov_b32 v5, 1.0")
        e("  s_mov_b64 exec, -1")
        e("  s_nop 1")
        def M(i):
            t=T0+8*(i&1); d=D0+4*i
            e(f"  v_mfma_f32_16x16x32_bf16 v[{t}:{t+3}], v[4:7], v[{d}:{d+3}], v[12:15]")
            e(f"  v_mfma_f32_16x16x32_bf16 v[{t+4}:{t+7}], v[2:5], v[{d}:{d+3}], v[12:15]")
        M(0)
        for i in range(L):
            if i+1<L: M(i+1)
            if i==0: e("  s_nop 5")
            t0=T0+8*(i&1)
            for j in range(4):
                t=t0+2*j; e(f"  v_pk_fma_f32 v[{t}:{t+1}], v[{t}:{t+1}], {FMA}")
            for j in range(4):
                t=t0+2*j; e(f"  v_cvt_pk_bf16_f32 v{D0+4*i+j}, v{t}, v{t+1}")
            store(i)
    if dry: e("  s_cbranch_execz L_dryend")
    e("  s_cmp_eq_u32 s33, 2")
    e("  s_cbranch_scc0 L_done")
    e("  s_waitcnt vmcnt(0)")
    e("L_switch:")
    e("  s_add_u32 s33, s33, 1")
    e("  s_xor_b32 s26, s26, 1")
    e("  s_branch L_saddr")
    e("@@OTHER0@@")
    e("L_other:")
    e("  s_waitcnt lgkmcnt(0)")
    if nblind:
        e(f"  s_cmp_lt_u32 s20, {nblind}")
        e("  s_cbranch_scc1 L_go")
    if dry:
        e("  s_cmp_lg_u32 s16, 1")
        e("  s_cbranch_scc1 L_dwait")
        e("  s_mov_b64 exec, 0")
        e("  s_setprio 0")
        e("  s_branch L_norm")
        e("L_dryend:")
        e("  s_mov_b64 exec, -1")
        e("  s_setprio 3")
    e("  s_branch L_dwait")
    e("@@OTHER1@@")
    e(f"  s_and_b32 s18, {'s18' if alt else 's20'}, {GP-1}")
    e(f"  s_lshl_b32 s19, s19, {LG}")
    e("  s_or_b32 s18, s18, s19")
    e("  s_lshl_b32 s18, s18, 2")
    e(f"  s_add_u32 s18, s18, {voff}")
    e("  s_mov_b32 s34, 0")
    e("  s_waitcnt lgkmcnt(0)")
    if prof: e("  s_memrealtime s[76:77]")
    e("  s_memtime s[50:51]")
    e("  s_lshr_b32 s19, s42, 13")
    e("  s_xor_b32 s19, s19, s24")
    e(f"  s_add_u32 s56, s28, {TAGC:#x}")
    e("  s_andn2_b32 s56, s56, 0xff             ; tag")
    e("  s_waitcnt lgkmcnt(0)")
    e("  s_load_dword s44, s[40:41], s42 glc")
    e("  s_waitcnt lgkmcnt(0)")
    e("  s_memtime s[52:53]")
    e("  s_waitcnt lgkmcnt(0)")
    e("  s_load_dword s44, s[40:41], s43 glc")
    e("  s_waitcnt lgkmcnt(0)")
    e("  s_memtime s[54:55]")
    e("  s_lshl_b32 s44, s52, 1")
    e("  s_sub_u32 s44, s44, s50")
    e("  s_waitcnt lgkmcnt(0)")
    if prof: e("  s_memrealtime s[78:79]")
    e("  s_sub_u32 s44, s44, s54")
    e("  s_sub_u32 s46, 0, s44")
    e("  s_cmp_lg_u32 s19, 0")
    e("  s_cselect_b32 s44, s46, s44")
    e("  s_ashr_i32 s44, s44, 3")
    e(f"  s_min_i32 s44, s44, {clip}")
    e(f"  s_max_i32 s44, s44, {-clip}")
    e("  s_add_u32 s44, s44, 128")
    e("  s_or_b32 s44, s44, s56")
    if force != 1: e("  s_atomic_swap s44, s[12:13], s18")
    if nblind:
        e(f"  s_cmp_lt_u32 s20, {nblind}")
        e("  s_cbranch_scc1 L_go")
    e("  s_mov_b32 s57, s56")
    e(f"  s_mov_b32 s58, {TAGC:#x}")
    if not nowait: e("  s_waitcnt lgkmcnt(0)")
    if prof: e("  s_memrealtime s[80:81]")
    e("L_dpoll:")
    e(f"  s_load_dwordx{grp} s[{V}:{V+grp-1}], s[12:13], {voff} glc")
    e("  s_add_u32 s34, s34, 1")
    e("  s_waitcnt lgkmcnt(0)")
    for k in range(0,grp,2):
        e(f"  s_xor_b64 s[{V+k}:{V+k+1}], s[{V+k}:{V+k+1}], s[56:57]")
    if grp==2: e(f"  s_mov_b64 s[54:55], s[{V}:{V+1}]")
    else: e(f"  s_or_b64 s[54:55], s[{V}:{V+1}], s[{V+2}:{V+3}]")
    for k in range(4,grp,2):
        e(f"  s_or_b64 s[54:55], s[54:55], s[{V+k}:{V+k+1}]")
    e("  s_or_b32 s54, s54, s55")
    e("  s_lshr_b32 s54, s54, 8")
    e("  s_cbranch_scc0 L_votes")
    e(f"  s_cmp_lt_u32 s34, {limit}")
    e("  s_cbranch_scc1 L_dpoll")
    e("  s_atomic_add s58, s[12:13], 0")
    e("  s_mov_b32 s44, 6")
    e("  s_branch L_dgot")
    e("L_votes:")
    e(f"  s_cmp_lg_u32 s18, {voff+28 if nblind else voff}")
    e("  s_cbranch_scc1 L_nobump")
    e("  s_atomic_add s58, s[12:13], 0")
    e("L_nobump:")
    if prof: e("  s_mov_b32 s82, s34")
    for half in (0,1):
        base=V+half*GP
        for k in range(1,GP): e(f"  s_add_u32 s{base}, s{base}, s{base+k}")
        e(f"  s_addk_i32 s{base}, {-128*GP}")
    if grp<16:
        e(f"  s_add_u32 s46, s{V}, s{V+GP}")
        e("  s_bitcmp1_b32 s59, 12")
        e(f"  s_cselect_b32 s{V+8}, s46, s{V+GP}")
        e(f"  s_cselect_b32 s{V}, s46, s{V}")
    if prof: e(f"  s_mov_b32 s{PR+14}, s{V}"); e(f"  s_mov_b32 s{PR+15}, s{V+8}")
    e(f"  s_abs_i32 s54, s{V}")
    e(f"  s_abs_i32 s55, s{V+8}")
    e("  s_min_u32 s54, s54, s55")
    e(f"  s_lshr_b32 s{V}, s{V}, 31")
    e(f"  s_lshr_b32 s{V+8}, s{V+8}, 31")
    e("  s_xor_b32 s46, s24, 1")
    e(f"  s_xor_b32 s{V}, s{V}, s46")
    e(f"  s_xor_b32 s{V+8}, s{V+8}, s46")
    e("  s_sub_u32 s46, s10, s4")
    e("  s_lshr_b32 s46, s46, 12")
    e(f"  s_xor_b32 s47, s{V}, s{V+8}")
    e("  s_lshl_b32 s47, s47, 1")
    e("  s_xor_b32 s46, s46, s47")
    e("  s_and_b32 s46, s46, 3")
    e("  s_cmp_eq_u32 s46, 2")
    e("  s_cselect_b32 s54, 0, s54")
    e(f"  s_lshl_b32 s{V}, s{V}, 3")
    e(f"  s_or_b32 s44, s{V}, s{V+8}")
    e("  s_or_b32 s44, s44, 2")
    e(f"  s_cmp_gt_u32 s54, {thr}")
    e("  s_cselect_b32 s44, s44, 0")
    e("L_dgot:")
    e("  s_or_b32 s44, s44, s56")
    e("  v_mov_b32 v6, 0")
    e("  v_mov_b32 v7, 0")
    e("  v_mov_b32 v8, s44")
    e("  ds_write_b96 v6, v[6:8] offset:64")
    e("  ds_write2_b32 v6, v6, v7 offset0:35 offset1:39")
    e("  s_waitcnt lgkmcnt(0)")
    e("L_dwait:")
    e("  v_mov_b32 v10, 0")
    e("  s_barrier")
    e("  ds_read_b32 v6, v10 offset:72")
    e("  s_waitcnt lgkmcnt(0)")
    e("  v_readfirstlane_b32 s44, v6")
    e("  s_bitcmp1_b32 s44, 1")
    e("  s_cbranch_scc0 L_go")
    e("  s_mov_b32 s33, 1")
    if grp<16:
        e(f"  s_bitcmp0_b32 s22, {0 if alt else LG}")
    elif hyb=="k":
        e("  s_lshr_b32 s25, s16, 1"); e("  s_xor_b32 s25, s25, s20"); e("  s_bitcmp1_b32 s25, 0")
    elif hyb=="j": e("  s_bitcmp1_b32 s20, 0")
    elif hyb=="i": e("  s_bitcmp0_b32 s20, 0")
    elif hyb=="J": e("  s_bitcmp1_b32 s20, 1")
    elif hyb=="K": e("  s_bitcmp1_b32 s20, 2")
    elif hyb=="q": e("  s_bitcmp1_b32 s2, 0")
    elif hyb=="r": e("  s_bitcmp0_b32 s2, 0")
    elif hyb=="Q": e("  s_bitcmp1_b32 s2, 1")
    elif hyb=="p": e("  s_bitcmp1_b32 s20, 3")
    elif hyb=="z": e("  s_xor_b32 s25, s20, s2"); e("  s_bitcmp1_b32 s25, 0")
    elif hyb=="w": e("  s_bitcmp1_b32 s16, 1")
    elif hyb=="W": e("  s_bitcmp0_b32 s16, 1")
    elif hyb=="o": e("  s_cmp_eq_u32 s16, 9")
    elif hyb=="x": e("  s_cmp_lg_u32 s16, 9")
    e("  s_cselect_b32 s25, 3, 0")
    e("  s_cselect_b32 s49, s4, s10")
    e("  s_lshr_b32 s25, s44, s25")
    e("  s_and_b32 s25, s25, 1                  ; parity")
    e("  s_and_b32 s21, s49, 0x3000")
    e("  s_mov_b32 s26, s25")
    if wpair==2:
        e("  s_or_b32 s27, s16, s24")
        e("  s_cbranch_scc1 L_saddr")
        e("  s_lshl_b32 s45, s22, 6")
        e("  s_add_u32 s45, s45, 0x80000")
        e("  s_load_dword s45, s[14:15], s45 glc")
    e("L_saddr:")
    e("  s_lshr_b32 s27, s16, 1")
    e("  s_lshl_b32 s27, s27, 17")
    e("  s_add_u32 s27, s27, s23")
    e("  v_and_b32 v1, 63, v0")
    e("  v_lshl_add_u32 v1, v1, 4, s27")
    e("  s_lshl_b32 s35, s16, 16")
    e("  s_lshl_b32 s27, s26, 13")
    e("  s_add_u32 s35, s35, s27")
    e("  s_sub_u32 s35, s35, s21")
    e("  s_mov_b32 s36, 0x1ffff")
    for k in range(8):
        e("  s_and_b32 s27, s35, s36")
        e(f"  v_add_u32 v{A0+k}, s27, v1")
        if k<7: e(f"  s_addk_i32 s35, {0x1000 if k%2==0 else 0x3000:#x}")
    e("L_go:")
    stamp(1)
    for i in range(4): load(i)
    e("  s_branch L_go4")
    e("@@END@@")
    e("L_split:")
    if lprio: e(f"  s_setprio {lprio}")
    e("  s_lshr_b32 s17, s16, 1")
    e("  s_lshl_b32 s18, s17, 2")
    e("  s_lshl_b32 s19, s17, 4")
    e("  v_mov_b32 v11, s18")
    e("  v_mov_b32 v12, 1")
    e("  v_mov_b32 v15, s19")
    e("  ds_add_rtn_u32 v12, v11, v12 offset:64")
    e("  v_xor_b32 v10, 8, v10")
    e("  s_waitcnt lgkmcnt(0)")
    e("  v_readlane_b32 s36, v12, 63")
    e("  s_bitcmp1_b32 s36, 0")
    e("  s_cbranch_scc0 L_pwait")
    e("  ds_read_b64 v[12:13], v10")
    e("  v_mov_b32 v8, v6")
    gb("s17")
    e("  s_lshl_b32 s36, s22, 6")
    e("  s_add_u32 s36, s36, 0x80000")
    e("  s_add_u32 s38, s14, s36")
    e("  s_addc_u32 s39, s15, 0")
    e("  s_lshl_b32 s56, s25, 5")
    e("  s_add_u32 s56, s56, s19")
    e("  s_add_u32 s57, s56, 8")
    e("  s_xor_b32 s46, s56, 32")
    e("  s_andn2_b32 s45, s44, 0xff             ; tag")
    e("  s_mov_b32 s53, s45")
    e("  s_mov_b32 s55, s45")
    e("  s_waitcnt lgkmcnt(0)")
    merge(NPW)
    e("  s_cmp_eq_u32 s33, 1")
    e("  s_cbranch_scc0 L_alone")
    e("  v_readlane_b32 s52, v8, 63")
    e("  v_readlane_b32 s54, v7, 63")
    e("  s_bitcmp1_b32 s44, 2")
    e("  s_cbranch_scc1 L_timeout")
    e("  s_mov_b32 s34, 0")
    e("  s_nop 1")
    if force != 2:
        e("  s_atomic_swap_x2 s[52:53], s[38:39], s56")
        e("  s_atomic_swap_x2 s[54:55], s[38:39], s57")
    e("L_poll:")
    e("  s_load_dwordx4 s[40:43], s[38:39], s46 glc")
    e("  s_add_u32 s34, s34, 1")
    e("  s_waitcnt lgkmcnt(0)")
    e("  s_xor_b32 s41, s41, s45")
    e("  s_xor_b32 s43, s43, s45")
    e("  s_or_b32 s41, s41, s43")
    e("  s_cbranch_scc0 L_got")
    e(f"  s_cmp_lt_u32 s34, {limit}")
    e("  s_cbranch_scc1 L_poll")
    e("L_timeout:")
    e("  v_mov_b32 v9, v7")
    e("  ds_write_b64 v15, v[8:9] offset:160")
    e("  v_mov_b32 v11, 5")
    e("  s_branch L_flag")
    e("L_alone:")
    e("  v_mov_b32 v11, 12")
    e("  s_cmp_eq_u32 s33, 3")
    e("  s_cbranch_scc1 L_flag")
    e("  ds_read_b64 v[12:13], v15 offset:160")
    e("  s_waitcnt lgkmcnt(0)")
    e("  s_branch L_comb")
    e("L_got:")
    e("  v_mov_b32 v12, s40")
    e("  v_mov_b32 v13, s42")
    e("L_comb:")
    merge(2*NPW)
    params()
    e("  s_lshl_b32 s36, s33, 2")
    e("  v_mov_b32 v11, s36")
    e("  ds_write_b96 v15, v[8:10] offset:128")
    e("L_flag:")
    e("  ds_write_b32 v15, v11 offset:140")
    e("L_pwait:")
    e("  s_mov_b64 exec, -1")
    e("  v_mov_b32 v15, s19")
    e("L_pspin:")
    e("  ds_read_b128 v[8:11], v15 offset:128")
    e("  s_waitcnt lgkmcnt(0)")
    e("  v_readfirstlane_b32 s36, v11")
    e("  s_lshr_b32 s37, s36, 2")
    e("  s_cmp_lg_u32 s37, s33")
    e("  s_cbranch_scc1 L_pspin")
    e("  s_bitcmp1_b32 s36, 0")
    e("  s_cbranch_scc1 L_switch")
    e("  s_branch L_norm")
    e("L_done:")
    if prof:
        stamp(5)
        e("  s_waitcnt vmcnt(0)")
        stamp(6)
        e("  s_getreg_b32 s36, hwreg(HW_REG_XCC_ID)")
        e("  s_getreg_b32 s37, hwreg(HW_REG_HW_ID)")
        e("  s_waitcnt lgkmcnt(0)")
        e("  s_lshl_b32 s3, s2, 2"); e("  s_add_u32 s3, s3, s16"); e("  s_lshl_b32 s3, s3, 6"); e("  s_add_u32 s3, s3, 0x100000")
        e("  v_mov_b32 v5, s3")
        for k in range(7): e(f"  v_mov_b32 v{8+k}, s{PR+2*k}")
        e("  s_lshl_b32 s22, s22, 1")
        e("  v_mov_b32 v15, s22")
        e("  s_mov_b64 exec, 1")
        e("  global_store_dwordx4 v5, v[8:11], s[14:15]")
        e("  global_store_dwordx4 v5, v[12:15], s[14:15] offset:16")
        e("  v_mov_b32 v16, s36"); e("  v_mov_b32 v17, s37"); e("  v_mov_b32 v18, s80"); e("  v_mov_b32 v19, s82")
        e(f"  v_mov_b32 v20, s{PR+14}"); e(f"  v_mov_b32 v21, s{PR+15}"); e("  v_mov_b32 v22, s76"); e("  v_mov_b32 v23, s78")
        e("  global_store_dwordx4 v5, v[16:19], s[14:15] offset:32")
        e("  global_store_dwordx4 v5, v[20:23], s[14:15] offset:48")
    e("L_end:"); e("  s_endpgm")
    nv=T0+max({"5":0,"4":8,"m":16}[norm], 8 if dot==2 else 0)
    e('.section .rodata,"a"'); e(".p2align 6"); e(f".amdhsa_kernel {name}")
    e(f"  .amdhsa_next_free_vgpr {nv}"); e(f"  .amdhsa_next_free_sgpr {88 if (prof or tgate) else 60}"); e(f"  .amdhsa_accum_offset {(nv+3)//4*4}")
    e("  .amdhsa_group_segment_fixed_size 0"); e("  .amdhsa_kernarg_size 48"); e("  .amdhsa_user_sgpr_count 2")
    e("  .amdhsa_user_sgpr_kernarg_segment_ptr 1"); e("  .amdhsa_system_sgpr_workgroup_id_x 1")
    e("  .amdhsa_float_denorm_mode_32 3"); e(".end_amdhsa_kernel")
    t="\n".join(o)+"\n"
    a=t.index("@@OTHER0@@\n"); b=t.index("@@OTHER1@@\n"); c=t.index("@@END@@\n")
    other=t[a+11:b]; meas=t[b+11:c]
    t=t[:a]+t[c+8:]
    t=t.replace("@@MEASURE@@\n", meas+other)
    return t
if __name__=="__main__":
    ap=argparse.ArgumentParser()
    I=dict(nstat=24,khi=14,thr=40,limit=4096,lds=65536,dot=1,warm=0,force=0,prof=0,dry=0,nblind=0,voff=128,wpair=0,tgate=0,tall=0,nowait=0,clip=127,grp=16,alt=0,lprio=0,sprio=0); S=dict(norm="5",hyb="k")
    for k,d in I.items(): ap.add_argument("--"+k,type=int,default=d)
    for k,d in S.items(): ap.add_argument("--"+k,default=d)
    ap.add_argument("-o",default="-"); a=ap.parse_args()
    kw={k:getattr(a,k) for k in list(I)+list(S)}
    (sys.stdout if a.o=="-" else open(a.o,"w")).write(gen(**kw))
```

```python
import sys, argparse, struct
def f2h(x): return "0x%08x" % struct.unpack("<I", struct.pack("<f", x))[0]
name="standalone__instancenorm__prompt_kernel"
TAGC = 0x6B43A900
PSTR = 4352
DP=["quad_perm:[1,0,3,2] row_mask:0xf bank_mask:0xf", "quad_perm:[2,3,0,1] row_mask:0xf bank_mask:0xf",
    "row_half_mirror row_mask:0xf bank_mask:0xf", "row_mirror row_mask:0xf bank_mask:0xf",
    "row_bcast:15 row_mask:0xa bank_mask:0xf", "row_bcast:31 row_mask:0xc bank_mask:0xf"]

def gen(nstat=24, khi=14, thr=40, limit=4096, lds=65536, dot=1, norm="5", warm=0, force=0, prof=0, hyb="k", dry=0, nblind=0, voff=128, wpair=0, tgate=0, tall=0, nowait=0, clip=127, grp=16, alt=0, lprio=0, sprio=0, plast=0, pfirst=0, stf="sc1", ldf="nt", swin=-1, sn=32, kb=-1, kbit=0, pfo=0, nw=4, helpn=0, hfrom=32, header=""):
    o=[]; e=o.append
    GP=grp//2; LG={8:3,4:2,2:1,1:0}[GP]
    L=128//nw; NP=L//4; A0=16; D0=16+NP; NPW=65536//nw; nwg=448+8*helpn; V=36; PR=60; T0=D0+4*L; LW={4:2,8:3}[nw]
    def stamp(k):
        if prof: e(f"  s_memrealtime s[{PR+2*k}:{PR+2*k+1}]")
    def params():
        e("  v_cvt_pk_bf16_f32 v10, v8, v8")
        e("  v_and_b32 v10, s31, v10")
        e("  v_sub_f32 v8, v8, v10")
        e("  v_mul_f32 v8, v8, v8")
        e(f"  v_fmac_f32 v8, {f2h(1.0/65536)}, v7")
        e("  v_max_f32 v8, 0, v8")
        e("  v_cvt_pk_bf16_f32 v8, v8, v8")
        e("  v_and_b32 v8, s31, v8")
        e(f"  v_add_f32 v8, {f2h(1e-5)}, v8            ; + eps")
        e("  v_cvt_pk_bf16_f32 v8, v8, v8")
        e("  v_and_b32 v8, s31, v8")
        e("  v_sqrt_f32 v8, v8")
        e("  v_mov_b32 v9, s27                       ; b")
        e("  v_cvt_pk_bf16_f32 v8, v8, v8")
        e("  v_and_b32 v8, s31, v8")
        e("  v_rcp_f32 v8, v8")
        e("  s_nop 0")
        e("  v_mul_f32 v8, s35, v8")
    def gb(sel):
        e(f"  s_lshl_b32 s27, {sel}, 4")
        e("  s_xor_b32 s27, s27, 16")
        e("  s_lshl_b32 s35, s29, s27")
        e("  s_lshl_b32 s27, s30, s27")
        e("  s_and_b32 s35, s35, s31                 ; g")
        e("  s_and_b32 s27, s27, s31                 ; b")
    def merge(n):
        e("  v_sub_f32 v14, v12, v8")
        e("  v_add_f32 v8, v12, v8")
        e("  v_add_f32 v7, v13, v7")
        e("  v_mul_f32 v8, 0.5, v8")
        e("  v_mul_f32 v14, v14, v14")
        e(f"  v_fmac_f32 v7, {f2h(n/2.0)}, v14")
    if header: e(header.rstrip("\n"))
    e(f"; @launch grid=({nwg},1,1) block=({64*nw},1,1) lds={max(lds,256)}")
    e('.amdgcn_target "amdgcn-amd-amdhsa--gfx950"')
    e(".text"); e(f".globl {name}"); e(".p2align 8"); e(f".type {name},@function"); e(f"{name}:")
    stamp(0)
    if tgate: e("  s_memrealtime s[84:85]")
    def addr(i): return f"v{A0+i//4}", (i%4)*1024
    def load(i):
        v,off=addr(i)
        e(f"  global_load_dwordx4 v[{D0+4*i}:{D0+4*i+3}], {v}, s[4:5] offset:{off} {ldf}")
    def common(ws=1):
        if ws: e("  s_load_dwordx2 s[14:15], s[0:1], 40    ; ws")
        e("  v_readfirstlane_b32 s16, v2            ; wave")
        e("  s_movk_i32 s26, 0x1000")
        for k in range(1,NP): e(f"  v_add_u32 v{A0+k}, s26, v{A0+k-1}")
        e("  s_mov_b32 s33, 0")
        if prof:
            e(f"  s_mov_b32 s{PR+14}, 0x7fffffff"); e(f"  s_mov_b32 s{PR+15}, 0x7fffffff"); e("  s_mov_b32 s34, 0")
            for r in (76,78,80,82): e(f"  s_mov_b32 s{r}, 0")
    e("  s_load_dwordx8 s[4:11], s[0:1], 0      ; x, g, b, out")
    e("  s_setprio 3")
    e("  s_and_b32 s17, s2, 3")
    e("  s_lshr_b32 s20, s2, 3                  ; j")
    e("  s_mul_i32 s22, s17, 56")
    e("  s_bfe_u32 s24, s2, 0x10002")
    e("  s_add_u32 s22, s22, s20                ; pair")
    e("  v_and_b32 v1, 63, v0")
    e("  v_lshrrev_b32 v2, 6, v0")
    e("  s_lshl1_add_u32 s27, s22, s24          ; channel")
    e("  v_lshlrev_b32 v1, 4, v1")
    e("  s_lshl_b32 s27, s27, 17")
    e(f"  v_lshl_add_u32 v{A0}, v2, {17-LW}, v1")
    e(f"  s_cmp_ge_u32 s20, {nstat}")
    e(f"  v_add_u32 v{A0}, s27, v{A0}")
    e("  s_cbranch_scc1 L_late")
    e("  s_waitcnt lgkmcnt(0)")
    stamp(1)
    for i in range(4): load(i)
    common(prof)
    e("L_go4:")
    for i in range(4,L): load(i)
    e("  s_branch L_stats")
    e("L_late:")
    e(f"  s_cmp_ge_u32 s20, {56+helpn}")
    e("  s_cbranch_scc1 L_end")
    if helpn:
        e("  s_mov_b32 s3, 0")
        e(f"  s_sub_u32 s12, s20, {hfrom}")
        e(f"  s_cmp_lt_u32 s12, {helpn}")
        e("  s_cselect_b32 s3, 1, 0")
        e("  s_cmp_ge_u32 s20, 56")
        e("  s_cbranch_scc0 L_nohelper")
        e("  s_mov_b32 s3, 2")
        e(f"  s_sub_u32 s20, s20, {56-hfrom}")
        e(f"  s_sub_u32 s22, s22, {56-hfrom}")
        e("L_nohelper:")
    if warm:
        e(f"  s_cmp_ge_u32 s20, {nstat+warm}")
        e("  s_cbranch_scc1 L_nowarm")
        e("  s_getpc_b64 s[52:53]")
        e("L_pc:")
        e(f"  v_lshlrev_b32 v6, {(5 if dot==1 else 6)-(2 if nw==8 else 0)}, v0")
        e("  v_min_u32 v6, L_end-L_pc, v6")
        e("  v_mov_b32 v9, s53")
        e("  v_add_co_u32 v8, vcc, s52, v6")
        e("  s_nop 1")
        e("  v_addc_co_u32 v9, vcc, 0, v9, vcc")
        e("  global_load_dword v3, v[8:9], off")
        e("L_nowarm:")
    common()
    e("  s_lshl_b32 s23, s22, 18")
    e("  s_cmp_lg_u32 s16, 0")
    e("  s_cbranch_scc1 L_other")
    if alt:
        e("  s_lshr_b32 s21, s22, 3")
        e("  s_and_b32 s59, s22, 1")
        e("  s_lshl1_add_u32 s21, s21, s59")
    else:
        e(f"  s_lshr_b32 s21, s22, {LG}")
    e(f"  s_mul_i32 s12, s21, {PSTR if grp==16 else 1280}")
    e("  s_mul_i32 s42, s2, 0x0b00")
    e("  s_and_b32 s43, s42, 0x1f00")
    e("  s_and_b32 s42, s42, 0xe000")
    e("  s_lshl1_add_u32 s42, s42, s43")
    e("  s_add_u32 s46, s42, s23")
    e(f"  s_lshl_b32 s42, s20, {11 if alt else 12}")
    e("  s_and_b32 s42, s42, 0x2000")
    e("  s_xor_b32 s43, s42, 0x2000")
    if alt:
        e("  s_lshr_b32 s18, s20, 1")
        e("  s_xor_b32 s19, s24, s18")
    else:
        e("  s_xor_b32 s19, s24, s20")
    e("  s_and_b32 s19, s19, 1")
    e("  s_waitcnt lgkmcnt(0)")
    if grp<16:
        e("  s_sub_u32 s59, s10, s4")
        e("  s_bitcmp1_b32 s59, 12")
        e("  s_cselect_b32 s47, s21, s19")
        e("  s_bitcmp1_b32 s47, 0")
    e("  s_cselect_b64 s[40:41], s[10:11], s[4:5]")
    e("  s_add_u32 s12, s14, s12")
    e("  s_addc_u32 s13, s15, 0")
    e("  s_and_b32 s47, s40, 0x3000")
    e("  s_sub_u32 s47, 0x4000, s47")
    e("  s_add_u32 s46, s46, s47")
    e("  s_add_u32 s40, s40, s46")
    e("  s_addc_u32 s41, s41, 0")
    e("  s_load_dword s28, s[12:13], 0 glc      ; epoch")
    e("  s_load_dword s44, s[40:41], s42 glc")
    e("  s_load_dword s44, s[40:41], s43 glc")
    if wpair==1:
        e("  s_lshl_b32 s45, s22, 6")
        e("  s_add_u32 s45, s45, 0x80000")
        e("  s_load_dword s44, s[14:15], s45 glc")
    e("@@MEASURE@@")
    e("L_stats:")
    e(f"  s_setprio {sprio}")
    e("  s_lshl_b32 s27, s22, 2")
    e("  s_load_dword s29, s[6:7], s27")
    e("  s_load_dword s30, s[8:9], s27")
    if pfo==1:
        e("  s_lshl_b32 s27, s22, 18")
        e("  s_load_dword s37, s[10:11], s27")
    if pfo==2:
        e(f"  global_load_dword v3, v{A0}, s[10:11]")
    e("  s_mov_b32 s31, 0xffff0000")
    if dot==1: e("  s_mov_b32 s48, 0x3f803f80              ; (1.0, 1.0)")
    if dot==2:
        e("  s_movk_i32 s50, 0x3f80                 ; (1.0, 0)")
        e("  s_mov_b32 s51, 1.0                     ; (0, 1.0)")
    for r in range(6,10): e(f"  v_mov_b32 v{r}, 0")
    for i in range(L):
        e(f"  s_waitcnt vmcnt({L-1-i+(1 if pfo==2 else 0)})")
        if i==0: stamp(2)
        if i==L-1: stamp(3)
        if dot==1:
            for j in range(4):
                d=D0+4*i+j
                e(f"  v_dot2c_f32_bf16 v{6+(j&1)}, s48, v{d}")
                e(f"  v_dot2c_f32_bf16 v{8+(j&1)}, v{d}, v{d}")
            continue
        if dot==2:
            if i==0:
                e(f"  v_readfirstlane_b32 s48, v{D0}")
                e("  s_lshl_b32 s48, s48, 16                ; shift K")
                e("  s_xor_b32 s49, s48, 0x80000000")
                e("  v_mov_b32 v10, s49")
            for j in range(4):
                d=D0+4*i+j
                e(f"  v_dot2_f32_bf16 v{T0+2*j}, v{d}, s50, v10")
                e(f"  v_dot2_f32_bf16 v{T0+2*j+1}, v{d}, s51, v10")
            for j in range(4):
                t=T0+2*j
                e(f"  v_pk_add_f32 v[6:7], v[6:7], v[{t}:{t+1}]")
                e(f"  v_pk_fma_f32 v[8:9], v[{t}:{t+1}], v[{t}:{t+1}], v[8:9]")
            continue
        if i==0:
            e(f"  v_readfirstlane_b32 s48, v{D0}")
            e("  s_lshl_b32 s48, s48, 16                ; shift K")
        for j in range(4):
            d=D0+4*i+j; t=10+2*(j&1)
            e(f"  v_lshlrev_b32 v{t}, 16, v{d}")
            e(f"  v_and_b32 v{t+1}, s31, v{d}")
            e(f"  v_pk_add_f32 v[{t}:{t+1}], v[{t}:{t+1}], s[48:49] op_sel_hi:[1,0] neg_lo:[0,1] neg_hi:[0,1]")
            e(f"  v_pk_add_f32 v[6:7], v[6:7], v[{t}:{t+1}]")
            e(f"  v_pk_fma_f32 v[8:9], v[{t}:{t+1}], v[{t}:{t+1}], v[8:9]")
    if dot==1:
        e("  s_lshl_b32 s27, s16, 3")
        e("  v_mov_b32 v10, s27")
        e(f"  v_and_b32 v11, {nw-1}, v0")
        e("  v_lshlrev_b32 v11, 3, v11")
        e("  v_add_f32 v14, v6, v7")
        e(f"  v_mul_f32 v12, {f2h(1.0/128)}, v6")
        e(f"  v_mul_f32 v13, {f2h(1.0/128)}, v7")
        e(f"  v_add_f32_dpp v15, v14, v14 {DP[0]}")
        e("  v_fma_f32 v8, -v12, v6, v8")
        e("  v_fma_f32 v9, -v13, v7, v9")
        e(f"  v_add_f32_dpp v15, v15, v15 {DP[1]}")
        e("  v_sub_f32 v12, v12, v13")
        e("  v_add_f32 v7, v8, v9")
        e(f"  v_add_f32_dpp v15, v15, v15 {DP[2]}")
        e("  v_mul_f32 v12, v12, v12")
        e(f"  v_mul_f32 v14, {f2h(1.0/256)}, v14")
        e(f"  v_add_f32_dpp v15, v15, v15 {DP[3]}")
        e(f"  v_fmac_f32 v7, {f2h(64.0)}, v12")
        e("  s_nop 0")
        e(f"  v_add_f32_dpp v15, v15, v15 {DP[4]}")
        e("  s_nop 1")
        e(f"  v_add_f32_dpp v15, v15, v15 {DP[5]}")
        e(f"  v_mul_f32 v6, {f2h(1.0/NPW)}, v15")
        e("  s_nop 0")
        e("  v_readlane_b32 s36, v6, 63")
        e("  s_nop 1")
        e("  v_subrev_f32 v14, s36, v14")
        e("  v_mul_f32 v14, v14, v14")
        e(f"  v_fmac_f32 v7, {f2h(256.0)}, v14")
        for dpp in DP:
            e("  s_nop 1")
            e(f"  v_add_f32_dpp v7, v7, v7 {dpp}")
    else:
        e("  v_add_f32 v6, v6, v7                    ; S")
        e("  v_add_f32 v7, v8, v9                    ; Q")
        e("  s_lshl_b32 s27, s16, 3")
        for k,dpp in enumerate(DP):
            e(f"  v_add_f32_dpp v6, v6, v6 {dpp}")
            e(f"  v_add_f32_dpp v7, v7, v7 {dpp}")
            e(["  v_mov_b32 v10, s27", f"  v_and_b32 v11, {nw-1}, v0", "  v_lshlrev_b32 v11, 3, v11"][k] if k<3 else "  s_nop 0")
        e(f"  v_mul_f32 v8, {f2h(1.0/NPW)}, v6        ; S/n")
        e("  v_fma_f32 v7, -v8, v6, v7               ; M2")
        e("  v_add_f32 v6, s48, v8")
    e("  s_mov_b32 exec_lo, 0")
    e("  s_brev_b32 exec_hi, 1")
    e("  ds_write_b64 v10, v[6:7]")
    e("  s_cmp_lg_u32 s33, 0")
    e("  s_cbranch_scc1 L_split")
    e("  s_mov_b64 exec, -1")
    e("  s_waitcnt lgkmcnt(0)")
    e("  s_barrier")
    e("  ds_read_b64 v[6:7], v11")
    gb("s24")
    e("  s_waitcnt lgkmcnt(0)")
    def comb(steps):
        e(f"  v_add_f32_dpp v8, v6, v6 {DP[0]}")
        for k in range(1,steps):
            e("  s_nop 1")
            e(f"  v_add_f32_dpp v8, v8, v8 {DP[k]}")
        e(f"  v_mul_f32 v8, {f2h(1.0/(1<<steps))}, v8            ; mean")
        e("  v_sub_f32 v6, v6, v8")
        e(f"  v_mul_f32 v10, {f2h(float(NPW))}, v6")
        e("  v_fmac_f32 v7, v10, v6")
        for k in range(steps):
            e("  s_nop 1")
            e(f"  v_add_f32_dpp v7, v7, v7 {DP[k]}")
    comb(LW)
    params()
    if khi:
        e(f"  s_cmp_lt_u32 s20, {max(nstat,nblind)}")
        e("  s_cbranch_scc0 L_norm")
        if kb==0:
            e("  s_setprio 0"); e(f"  s_bitcmp1_b32 s2, {kbit}"); e("  s_cbranch_scc1 L_norm")
        e("  s_setprio 3")
    e("L_norm:")
    if lprio==3 or (sprio and not lprio):
        e(f"  s_cmp_lt_u32 s20, {nstat}"); e("  s_cbranch_scc1 L_lp"); e("  s_setprio 0"); e("L_lp:")
    if tgate and tall:
        e(f"  s_cmp_lt_u32 s20, {nstat}")
        e("  s_cbranch_scc1 L_tax")
        e("L_ta:")
        e("  s_memrealtime s[86:87]"); e("  s_waitcnt lgkmcnt(0)"); e("  s_sub_u32 s86, s86, s84"); e(f"  s_cmp_lt_u32 s86, {tgate}"); e("  s_cbranch_scc1 L_ta")
        e("L_tax:")
    stamp(4)
    if swin>=0:
        e("  s_lshr_b32 s36, s20, 3")
        e("  s_cmp_eq_u32 s36, 3")
        e("  s_cselect_b64 vcc, -1, 0")
    def store(i):
        v,off=addr(i)
        if dry: e(f"  s_cbranch_execz L_ns{i}")
        fl = "" if (i>=L-plast or i<pfirst) else stf
        e(f"  global_store_dwordx4 {v}, v[{D0+4*i}:{D0+4*i+3}], s[10:11] offset:{off} {fl}".rstrip())
        if dry: e(f"L_ns{i}:")
        if swin>=0 and swin<=i<min(sn,L-1):
            e(f"  s_cbranch_vccz L_sw{i}")
            e(f"  s_waitcnt vmcnt({swin})")
            e(f"L_sw{i}:")
        if kb>0 and i==kb-1:
            e(f"  s_bitcmp1_b32 s2, {kbit}"); e("  s_cbranch_scc0 L_kb"); e("  s_setprio 0"); e("L_kb:")
        if khi and i==khi-1:
            if lprio==1:
                e(f"  s_cmp_lt_u32 s20, {nstat}"); e("  s_cbranch_scc0 L_kp"); e("  s_setprio 0"); e("L_kp:")
            else: e("  s_setprio 0")
            if tgate:
                e(f"  s_cmp_lt_u32 s20, {nstat}")
                e("  s_cbranch_scc0 L_tgx")
                e("L_tg:")
                e("  s_memrealtime s[86:87]"); e("  s_waitcnt lgkmcnt(0)"); e("  s_sub_u32 s86, s86, s84"); e(f"  s_cmp_lt_u32 s86, {tgate}"); e("  s_cbranch_scc1 L_tg")
                e("L_tgx:")
    FMA="v[8:9], v[8:9] op_sel:[0,0,1] op_sel_hi:[1,0,1]"
    if norm=="5":
        for i in range(L):
            for j in range(4):
                d=D0+4*i+j; t=12+2*(j&1)
                e(f"  v_lshlrev_b32 v{t}, 16, v{d}")
                e(f"  v_and_b32 v{t+1}, s31, v{d}")
                e(f"  v_pk_add_f32 v[{t}:{t+1}], v[{t}:{t+1}], v[10:11] op_sel_hi:[1,0] neg_lo:[0,1] neg_hi:[0,1]")
                e(f"  v_pk_fma_f32 v[{t}:{t+1}], v[{t}:{t+1}], {FMA}")
                e(f"  v_cvt_pk_bf16_f32 v{d}, v{t}, v{t+1}")
            store(i)
    elif norm=="4":
        e("  s_movk_i32 s36, 0x3f80")
        e("  s_mov_b32 s37, 1.0")
        e("  v_xor_b32 v10, 0x80000000, v10")
        for i in range(L):
            for j in range(4):
                d=D0+4*i+j
                e(f"  v_dot2_f32_bf16 v{T0+2*j}, v{d}, s36, v10")
                e(f"  v_dot2_f32_bf16 v{T0+2*j+1}, v{d}, s37, v10")
            for j in range(4):
                t=T0+2*j; e(f"  v_pk_fma_f32 v[{t}:{t+1}], v[{t}:{t+1}], {FMA}")
            for j in range(4):
                t=T0+2*j; e(f"  v_cvt_pk_bf16_f32 v{D0+4*i+j}, v{t}, v{t+1}")
            store(i)
    else:
        for r in range(2,8): e(f"  v_mov_b32 v{r}, 0")
        for r in range(12,16): e(f"  v_xor_b32 v{r}, 0x80000000, v10")
        e("  s_mov_b32 exec_lo, 0x00100001")
        e("  s_mov_b32 exec_hi, 0x10000100")
        e("  v_mov_b32 v4, 0x3f80")
        e("  s_lshl_b64 exec, exec, 1")
        e("  v_mov_b32 v4, 1.0")
        e("  s_lshl_b64 exec, exec, 1")
        e("  v_mov_b32 v5, 0x3f80")
        e("  s_lshl_b64 exec, exec, 1")
        e("  v_mov_b32 v5, 1.0")
        e("  s_mov_b64 exec, -1")
        e("  s_nop 1")
        def M(i):
            t=T0+8*(i&1); d=D0+4*i
            e(f"  v_mfma_f32_16x16x32_bf16 v[{t}:{t+3}], v[4:7], v[{d}:{d+3}], v[12:15]")
            e(f"  v_mfma_f32_16x16x32_bf16 v[{t+4}:{t+7}], v[2:5], v[{d}:{d+3}], v[12:15]")
        M(0)
        for i in range(L):
            if i+1<L: M(i+1)
            if i==0: e("  s_nop 5")
            t0=T0+8*(i&1)
            for j in range(4):
                t=t0+2*j; e(f"  v_pk_fma_f32 v[{t}:{t+1}], v[{t}:{t+1}], {FMA}")
            for j in range(4):
                t=t0+2*j; e(f"  v_cvt_pk_bf16_f32 v{D0+4*i+j}, v{t}, v{t+1}")
            store(i)
    if dry: e("  s_cbranch_execz L_dryend")
    e("  s_cmp_eq_u32 s33, 2")
    e("  s_cbranch_scc0 L_done")
    e("  s_waitcnt vmcnt(0)")
    e("L_switch:")
    e("  s_add_u32 s33, s33, 1")
    e("  s_xor_b32 s26, s26, 1")
    e("  s_branch L_saddr")
    e("@@OTHER0@@")
    e("L_other:")
    e("  s_waitcnt lgkmcnt(0)")
    if nblind:
        e(f"  s_cmp_lt_u32 s20, {nblind}")
        e("  s_cbranch_scc1 L_go")
    if dry:
        e("  s_cmp_lg_u32 s16, 1")
        e("  s_cbranch_scc1 L_dwait")
        e("  s_mov_b64 exec, 0")
        e("  s_setprio 0")
        e("  s_branch L_norm")
        e("L_dryend:")
        e("  s_mov_b64 exec, -1")
        e("  s_setprio 3")
    e("  s_branch L_dwait")
    e("@@OTHER1@@")
    e(f"  s_and_b32 s18, {'s18' if alt else 's20'}, {GP-1}")
    e(f"  s_lshl_b32 s19, s19, {LG}")
    e("  s_or_b32 s18, s18, s19")
    e("  s_lshl_b32 s18, s18, 2")
    e(f"  s_add_u32 s18, s18, {voff}")
    e("  s_mov_b32 s34, 0")
    e("  s_waitcnt lgkmcnt(0)")
    if prof: e("  s_memrealtime s[76:77]")
    e("  s_memtime s[50:51]")
    e("  s_lshr_b32 s19, s42, 13")
    e("  s_xor_b32 s19, s19, s24")
    e(f"  s_add_u32 s56, s28, {TAGC:#x}")
    e("  s_andn2_b32 s56, s56, 0xff             ; tag")
    e("  s_waitcnt lgkmcnt(0)")
    e("  s_load_dword s44, s[40:41], s42 glc")
    e("  s_waitcnt lgkmcnt(0)")
    e("  s_memtime s[52:53]")
    e("  s_waitcnt lgkmcnt(0)")
    e("  s_load_dword s44, s[40:41], s43 glc")
    e("  s_waitcnt lgkmcnt(0)")
    e("  s_memtime s[54:55]")
    e("  s_lshl_b32 s44, s52, 1")
    e("  s_sub_u32 s44, s44, s50")
    e("  s_waitcnt lgkmcnt(0)")
    if prof: e("  s_memrealtime s[78:79]")
    e("  s_sub_u32 s44, s44, s54")
    e("  s_sub_u32 s46, 0, s44")
    e("  s_cmp_lg_u32 s19, 0")
    e("  s_cselect_b32 s44, s46, s44")
    e("  s_ashr_i32 s44, s44, 3")
    e(f"  s_min_i32 s44, s44, {clip}")
    e(f"  s_max_i32 s44, s44, {-clip}")
    e("  s_add_u32 s44, s44, 128")
    e("  s_or_b32 s44, s44, s56")
    if helpn:
        e("  s_cmp_eq_u32 s3, 2"); e("  s_cselect_b32 s18, 0x100, s18")
    if force != 1: e("  s_atomic_swap s44, s[12:13], s18")
    if nblind:
        e(f"  s_cmp_lt_u32 s20, {nblind}")
        e("  s_cbranch_scc1 L_go")
    e("  s_mov_b32 s57, s56")
    e(f"  s_mov_b32 s58, {TAGC:#x}")
    if not nowait: e("  s_waitcnt lgkmcnt(0)")
    if prof: e("  s_memrealtime s[80:81]")
    e("L_dpoll:")
    e(f"  s_load_dwordx{grp} s[{V}:{V+grp-1}], s[12:13], {voff} glc")
    e("  s_add_u32 s34, s34, 1")
    e("  s_waitcnt lgkmcnt(0)")
    for k in range(0,grp,2):
        e(f"  s_xor_b64 s[{V+k}:{V+k+1}], s[{V+k}:{V+k+1}], s[56:57]")
    if grp==2: e(f"  s_mov_b64 s[54:55], s[{V}:{V+1}]")
    else: e(f"  s_or_b64 s[54:55], s[{V}:{V+1}], s[{V+2}:{V+3}]")
    for k in range(4,grp,2):
        e(f"  s_or_b64 s[54:55], s[54:55], s[{V+k}:{V+k+1}]")
    e("  s_or_b32 s54, s54, s55")
    e("  s_lshr_b32 s54, s54, 8")
    e("  s_cbranch_scc0 L_votes")
    e(f"  s_cmp_lt_u32 s34, {limit}")
    e("  s_cbranch_scc1 L_dpoll")
    e("  s_atomic_add s58, s[12:13], 0")
    e("  s_mov_b32 s44, 6")
    e("  s_branch L_dgot")
    e("L_votes:")
    e(f"  s_cmp_lg_u32 s18, {voff+28 if nblind else voff}")
    e("  s_cbranch_scc1 L_nobump")
    e("  s_atomic_add s58, s[12:13], 0")
    e("L_nobump:")
    if prof: e("  s_mov_b32 s82, s34")
    for half in (0,1):
        base=V+half*GP
        for k in range(1,GP): e(f"  s_add_u32 s{base}, s{base}, s{base+k}")
        e(f"  s_addk_i32 s{base}, {-128*GP}")
    if grp<16:
        e(f"  s_add_u32 s46, s{V}, s{V+GP}")
        e("  s_bitcmp1_b32 s59, 12")
        e(f"  s_cselect_b32 s{V+8}, s46, s{V+GP}")
        e(f"  s_cselect_b32 s{V}, s46, s{V}")
    if prof: e(f"  s_mov_b32 s{PR+14}, s{V}"); e(f"  s_mov_b32 s{PR+15}, s{V+8}")
    e(f"  s_abs_i32 s54, s{V}")
    e(f"  s_abs_i32 s55, s{V+8}")
    e("  s_min_u32 s54, s54, s55")
    e(f"  s_lshr_b32 s{V}, s{V}, 31")
    e(f"  s_lshr_b32 s{V+8}, s{V+8}, 31")
    e("  s_xor_b32 s46, s24, 1")
    e(f"  s_xor_b32 s{V}, s{V}, s46")
    e(f"  s_xor_b32 s{V+8}, s{V+8}, s46")
    e("  s_sub_u32 s46, s10, s4")
    e("  s_lshr_b32 s46, s46, 12")
    e(f"  s_xor_b32 s47, s{V}, s{V+8}")
    e("  s_lshl_b32 s47, s47, 1")
    e("  s_xor_b32 s46, s46, s47")
    e("  s_and_b32 s46, s46, 3")
    e("  s_cmp_eq_u32 s46, 2")
    e("  s_cselect_b32 s54, 0, s54")
    e(f"  s_lshl_b32 s{V}, s{V}, 3")
    e(f"  s_or_b32 s44, s{V}, s{V+8}")
    e("  s_or_b32 s44, s44, 2")
    e(f"  s_cmp_gt_u32 s54, {thr}")
    e("  s_cselect_b32 s44, s44, 0")
    e("L_dgot:")
    e("  s_or_b32 s44, s44, s56")
    e("  v_mov_b32 v6, 0")
    e("  v_mov_b32 v7, 0")
    e("  v_mov_b32 v8, s44")
    e("  ds_write_b96 v6, v[6:8] offset:64")
    e("  ds_write2_b32 v6, v6, v7 offset0:35 offset1:39")
    e("  s_waitcnt lgkmcnt(0)")
    e("L_dwait:")
    e("  v_mov_b32 v10, 0")
    e("  s_barrier")
    e("  ds_read_b32 v6, v10 offset:72")
    e("  s_waitcnt lgkmcnt(0)")
    e("  v_readfirstlane_b32 s44, v6")
    e("  s_bitcmp1_b32 s44, 1")
    if helpn:
        e("  s_cbranch_scc1 L_issplit")
        e("  s_cmp_eq_u32 s3, 2")
        e("  s_cbranch_scc1 L_end")
        e("  s_branch L_go")
        e("L_issplit:")
        e("  s_lshr_b32 s27, s16, 1")
        e("  s_add_u32 s27, s27, s3")
        e("  s_cmp_eq_u32 s27, 2")
        e("  s_cbranch_scc1 L_end")
    else:
        e("  s_cbranch_scc0 L_go")
    e("  s_mov_b32 s33, 1")
    if grp<16:
        e(f"  s_bitcmp0_b32 s22, {0 if alt else LG}")
    elif hyb=="k":
        e("  s_lshr_b32 s25, s16, 1"); e("  s_xor_b32 s25, s25, s20"); e("  s_bitcmp1_b32 s25, 0")
    elif hyb=="j": e("  s_bitcmp1_b32 s20, 0")
    elif hyb=="i": e("  s_bitcmp0_b32 s20, 0")
    elif hyb=="J": e("  s_bitcmp1_b32 s20, 1")
    elif hyb=="K": e("  s_bitcmp1_b32 s20, 2")
    elif hyb=="q": e("  s_bitcmp1_b32 s2, 0")
    elif hyb=="r": e("  s_bitcmp0_b32 s2, 0")
    elif hyb=="Q": e("  s_bitcmp1_b32 s2, 1")
    elif hyb=="p": e("  s_bitcmp1_b32 s20, 3")
    elif hyb=="z": e("  s_xor_b32 s25, s20, s2"); e("  s_bitcmp1_b32 s25, 0")
    elif hyb=="w": e("  s_bitcmp1_b32 s16, 1")
    elif hyb=="W": e("  s_bitcmp0_b32 s16, 1")
    elif hyb=="o": e("  s_cmp_eq_u32 s16, 9")
    elif hyb=="x": e("  s_cmp_lg_u32 s16, 9")
    e("  s_cselect_b32 s25, 3, 0")
    e("  s_cselect_b32 s49, s4, s10")
    e("  s_lshr_b32 s25, s44, s25")
    e("  s_and_b32 s25, s25, 1                  ; parity")
    e("  s_and_b32 s21, s49, 0x3000")
    e("  s_mov_b32 s26, s25")
    if wpair==2:
        e("  s_or_b32 s27, s16, s24")
        e("  s_cbranch_scc1 L_saddr")
        e("  s_lshl_b32 s45, s22, 6")
        e("  s_add_u32 s45, s45, 0x80000")
        e("  s_load_dword s45, s[14:15], s45 glc")
    e("L_saddr:")
    e(f"  s_lshr_b32 s27, s16, {LW-1}")
    e("  s_lshl_b32 s27, s27, 17")
    e("  s_add_u32 s27, s27, s23")
    e("  v_and_b32 v1, 63, v0")
    e("  v_lshl_add_u32 v1, v1, 4, s27")
    e(f"  s_lshl_b32 s35, s16, {18-LW}")
    e("  s_lshl_b32 s27, s26, 13")
    e("  s_add_u32 s35, s35, s27")
    e("  s_sub_u32 s35, s35, s21")
    e("  s_mov_b32 s36, 0x1ffff")
    for k in range(NP):
        e("  s_and_b32 s27, s35, s36")
        e(f"  v_add_u32 v{A0+k}, s27, v1")
        if k<NP-1: e(f"  s_addk_i32 s35, {0x1000 if k%2==0 else 0x3000:#x}")
    e("L_go:")
    stamp(1)
    for i in range(4): load(i)
    e("  s_branch L_go4")
    e("@@END@@")
    e("L_split:")
    if lprio: e(f"  s_setprio {lprio}")
    e(f"  s_lshr_b32 s17, s16, {LW-1}")
    e("  s_lshl_b32 s18, s17, 2")
    e("  s_lshl_b32 s19, s17, 4")
    e("  v_mov_b32 v11, s18")
    e("  v_mov_b32 v12, 1")
    e("  v_mov_b32 v15, s19")
    e("  ds_add_rtn_u32 v12, v11, v12 offset:64")
    if nw==4:
        e("  v_xor_b32 v10, 8, v10")
        e("  s_waitcnt lgkmcnt(0)")
        e("  v_readlane_b32 s36, v12, 63")
        e("  s_bitcmp1_b32 s36, 0")
        e("  s_cbranch_scc0 L_pwait")
        e("  ds_read_b64 v[12:13], v10")
        e("  v_mov_b32 v8, v6")
    else:
        e("  s_waitcnt lgkmcnt(0)")
        e("  v_readlane_b32 s36, v12, 63")
        e("  s_and_b32 s36, s36, 3")
        e("  s_cmp_eq_u32 s36, 3")
        e("  s_cbranch_scc0 L_pwait")
        e("  s_mov_b64 exec, -1")
        e("  s_lshl_b32 s36, s17, 5")
        e("  v_and_b32 v10, 3, v0")
        e("  v_lshl_add_u32 v10, v10, 3, s36")
        e("  v_mov_b32 v15, s19")
        e("  ds_read_b64 v[6:7], v10")
    gb("s17")
    e("  s_lshl_b32 s36, s22, 6")
    e("  s_add_u32 s36, s36, 0x80000")
    e("  s_add_u32 s38, s14, s36")
    e("  s_addc_u32 s39, s15, 0")
    e("  s_lshl_b32 s56, s25, 5")
    e("  s_add_u32 s56, s56, s19")
    e("  s_add_u32 s57, s56, 8")
    e("  s_xor_b32 s46, s56, 32")
    e("  s_andn2_b32 s45, s44, 0xff             ; tag")
    e("  s_mov_b32 s53, s45")
    e("  s_mov_b32 s55, s45")
    e("  s_waitcnt lgkmcnt(0)")
    if nw==4: merge(NPW)
    else: comb(2)
    e("  s_cmp_eq_u32 s33, 1")
    e("  s_cbranch_scc0 L_alone")
    e("  v_readlane_b32 s52, v8, 63")
    e("  v_readlane_b32 s54, v7, 63")
    e("  s_bitcmp1_b32 s44, 2")
    e("  s_cbranch_scc1 L_timeout")
    e("  s_mov_b32 s34, 0")
    e("  s_nop 1")
    if force != 2:
        e("  s_atomic_swap_x2 s[52:53], s[38:39], s56")
        e("  s_atomic_swap_x2 s[54:55], s[38:39], s57")
    e("L_poll:")
    e("  s_load_dwordx4 s[40:43], s[38:39], s46 glc")
    e("  s_add_u32 s34, s34, 1")
    e("  s_waitcnt lgkmcnt(0)")
    e("  s_xor_b32 s41, s41, s45")
    e("  s_xor_b32 s43, s43, s45")
    e("  s_or_b32 s41, s41, s43")
    e("  s_cbranch_scc0 L_got")
    e(f"  s_cmp_lt_u32 s34, {limit}")
    e("  s_cbranch_scc1 L_poll")
    e("L_timeout:")
    e("  v_mov_b32 v9, v7")
    e("  ds_write_b64 v15, v[8:9] offset:160")
    e("  v_mov_b32 v11, 5")
    e("  s_branch L_flag")
    e("L_alone:")
    e("  v_mov_b32 v11, 12")
    e("  s_cmp_eq_u32 s33, 3")
    e("  s_cbranch_scc1 L_flag")
    e("  ds_read_b64 v[12:13], v15 offset:160")
    e("  s_waitcnt lgkmcnt(0)")
    e("  s_branch L_comb")
    e("L_got:")
    e("  v_mov_b32 v12, s40")
    e("  v_mov_b32 v13, s42")
    e("L_comb:")
    merge(32768)
    params()
    e("  s_lshl_b32 s36, s33, 2")
    e("  v_mov_b32 v11, s36")
    e("  ds_write_b96 v15, v[8:10] offset:128")
    e("L_flag:")
    e("  ds_write_b32 v15, v11 offset:140")
    e("L_pwait:")
    e("  s_mov_b64 exec, -1")
    e("  v_mov_b32 v15, s19")
    e("L_pspin:")
    e("  ds_read_b128 v[8:11], v15 offset:128")
    e("  s_waitcnt lgkmcnt(0)")
    e("  v_readfirstlane_b32 s36, v11")
    e("  s_lshr_b32 s37, s36, 2")
    e("  s_cmp_lg_u32 s37, s33")
    e("  s_cbranch_scc1 L_pspin")
    e("  s_bitcmp1_b32 s36, 0")
    e("  s_cbranch_scc1 L_switch")
    e("  s_branch L_norm")
    e("L_done:")
    if prof:
        stamp(5)
        e("  s_waitcnt vmcnt(0)")
        stamp(6)
        e("  s_getreg_b32 s36, hwreg(HW_REG_XCC_ID)")
        e("  s_getreg_b32 s37, hwreg(HW_REG_HW_ID)")
        e("  s_waitcnt lgkmcnt(0)")
        e(f"  s_lshl_b32 s3, s2, {LW}"); e("  s_add_u32 s3, s3, s16"); e("  s_lshl_b32 s3, s3, 6"); e("  s_add_u32 s3, s3, 0x100000")
        e("  v_mov_b32 v5, s3")
        for k in range(7): e(f"  v_mov_b32 v{8+k}, s{PR+2*k}")
        e("  s_lshl_b32 s22, s22, 1")
        e("  v_mov_b32 v15, s22")
        e("  s_mov_b64 exec, 1")
        e("  global_store_dwordx4 v5, v[8:11], s[14:15]")
        e("  global_store_dwordx4 v5, v[12:15], s[14:15] offset:16")
        e("  v_mov_b32 v16, s36"); e("  v_mov_b32 v17, s37"); e("  v_mov_b32 v18, s80"); e("  v_mov_b32 v19, s82")
        e(f"  v_mov_b32 v20, s{PR+14}"); e(f"  v_mov_b32 v21, s{PR+15}"); e("  v_mov_b32 v22, s76"); e("  v_mov_b32 v23, s78")
        e("  global_store_dwordx4 v5, v[16:19], s[14:15] offset:32")
        e("  global_store_dwordx4 v5, v[20:23], s[14:15] offset:48")
    e("L_end:"); e("  s_endpgm")
    nv=T0+max({"5":0,"4":8,"m":16}[norm], 8 if dot==2 else 0)
    e('.section .rodata,"a"'); e(".p2align 6"); e(f".amdhsa_kernel {name}")
    e(f"  .amdhsa_next_free_vgpr {nv}"); e(f"  .amdhsa_next_free_sgpr {88 if (prof or tgate) else 60}"); e(f"  .amdhsa_accum_offset {(nv+3)//4*4}")
    e("  .amdhsa_group_segment_fixed_size 0"); e("  .amdhsa_kernarg_size 48"); e("  .amdhsa_user_sgpr_count 2")
    e("  .amdhsa_user_sgpr_kernarg_segment_ptr 1"); e("  .amdhsa_system_sgpr_workgroup_id_x 1")
    e("  .amdhsa_float_denorm_mode_32 3"); e(".end_amdhsa_kernel")
    t="\n".join(o)+"\n"
    a=t.index("@@OTHER0@@\n"); b=t.index("@@OTHER1@@\n"); c=t.index("@@END@@\n")
    other=t[a+11:b]; meas=t[b+11:c]
    t=t[:a]+t[c+8:]
    t=t.replace("@@MEASURE@@\n", meas+other)
    return t
if __name__=="__main__":
    ap=argparse.ArgumentParser()
    I=dict(nstat=24,khi=14,thr=40,limit=4096,lds=65536,dot=1,warm=0,force=0,prof=0,dry=0,nblind=0,voff=128,wpair=0,tgate=0,tall=0,nowait=0,clip=127,grp=16,alt=0,lprio=0,sprio=0,plast=0,pfirst=0,swin=-1,sn=32,kb=-1,kbit=0,pfo=0,nw=4,helpn=0,hfrom=32); S=dict(norm="5",hyb="k")
    for k,d in I.items(): ap.add_argument("--"+k,type=int,default=d)
    for k,d in S.items(): ap.add_argument("--"+k,default=d)
    ap.add_argument("-o",default="-"); a=ap.parse_args()
    kw={k:getattr(a,k) for k in list(I)+list(S)}
    (sys.stdout if a.o=="-" else open(a.o,"w")).write(gen(**kw))
```
